```python
import torch

def _softmax(x, axis=-1):
    return torch.softmax(x, dim=axis)
def _gelu(x):
    return torch.nn.functional.gelu(x, approximate="tanh")
def _silu(x):
    return torch.nn.functional.silu(x)
def _sigmoid(x):
    return torch.sigmoid(x)
def _layernorm(x, axis=-1, eps=1e-5):
    m = x.mean(dim=axis, keepdim=True)
    v = x.var(dim=axis, keepdim=True, unbiased=False)
    return (x - m) / torch.sqrt(v + eps)
def _scatter_add(tgt, idx, src, axis=0):
    return tgt.clone().index_add_(axis, idx, src)
def _segment_sum(src, seg, n):
    out = torch.zeros((n,) + src.shape[1:], dtype=src.dtype)
    return out.index_add_(0, seg, src)
def _pad(x, pw):
    flat = tuple(v for pair in reversed(pw) for v in pair)
    return torch.nn.functional.pad(x, flat)

kernel_name = 'concat_heads__gqa_block_cached__mha_block_cached__near_ridge'

def setup_inputs():

    _w = (lambda a: (lambda t: t.to(torch.bfloat16) if t.is_floating_point() else t)(torch.as_tensor(a)))
    def _A_setup():
        B, Sq, D = 8, 96, 640
        Hq, Hkv, Sk, Dh = 32, 32, 512, 128
        assert Hq % Hkv == 0, (Hq, Hkv)
        return {
            "x": _w((lambda *s: torch.randn(*s, dtype=torch.bfloat16) * 0.8)(B, Sq, D)),
            "k_cache": _w((lambda *s: torch.randn(*s, dtype=torch.bfloat16) * 0.8)(B, Hkv, Sk, Dh)),
            "v_cache": _w((lambda *s: torch.randn(*s, dtype=torch.bfloat16) * 0.05)(B, Hkv, Sk, Dh)),
            "wq": _w((lambda *s: torch.randn(*s, dtype=torch.bfloat16) * 0.8)(D, Hq * Dh) * (D ** -0.5)),
            "wo": _w((lambda *s: torch.randn(*s, dtype=torch.bfloat16) * 0.05)(Hq * Dh, D) * ((Hq * Dh) ** -0.5)),
        }
    _A_in = _A_setup()

    def _B_setup():
        B, Sq, D = 8, 96, 640
        H, Sk, Dh = 32, 512, 128
        return {
            "x": _w((lambda *s: torch.randn(*s, dtype=torch.bfloat16) * 0.8)(B, Sq, D)),
            "k_cache": _w((lambda *s: torch.randn(*s, dtype=torch.bfloat16) * 0.8)(B, H, Sk, Dh)),
            "v_cache": _w((lambda *s: torch.randn(*s, dtype=torch.bfloat16) * 0.05)(B, H, Sk, Dh)),
            "wq": _w((lambda *s: torch.randn(*s, dtype=torch.bfloat16) * 0.8)(D, H * Dh) * (D ** -0.5)),
            "wo": _w((lambda *s: torch.randn(*s, dtype=torch.bfloat16) * 0.05)(H * Dh, D) * ((H * Dh) ** -0.5)),
        }
    _B_in = _B_setup()

    return {
        "A_x": _A_in["x"],
        "A_k_cache": _A_in["k_cache"],
        "A_v_cache": _A_in["v_cache"],
        "A_wq": _A_in["wq"],
        "A_wo": _A_in["wo"],
        "B_x": _B_in["x"],
        "B_k_cache": _B_in["k_cache"],
        "B_v_cache": _B_in["v_cache"],
        "B_wq": _B_in["wq"],
        "B_wo": _B_in["wo"],
    }

def reference(A_x, A_k_cache, A_v_cache, A_wq, A_wo, B_x, B_k_cache, B_v_cache, B_wq, B_wo):
    def _A_ref(x, k_cache, v_cache, wq, wo):
        B, Sq, D = x.shape
        Hq, Dh = 32, 128
        Hkv = k_cache.shape[1]
        rep = Hq // Hkv
        q = (lambda x, *d: x.permute(*d))((x @ wq).reshape(B, Sq, Hq, Dh), 0, 2, 1, 3)
        k = (lambda x, n, axis: torch.repeat_interleave(x, n, dim=axis))(k_cache, rep, axis=1)
        v = (lambda x, n, axis: torch.repeat_interleave(x, n, dim=axis))(v_cache, rep, axis=1)
        scores = torch.einsum("bhqd,bhkd->bhqk", q, k) * (Dh ** -0.5)
        p = _softmax(scores, axis=-1)
        o = torch.einsum("bhqk,bhkd->bhqd", p, v)
        return (lambda x, *d: x.permute(*d))(o, 0, 2, 1, 3).reshape(B, Sq, Hq * Dh) @ wo

    def _B_ref(x, k_cache, v_cache, wq, wo):
        B, Sq, D = x.shape
        H, Dh = 32, 128
        q = (lambda x, *d: x.permute(*d))((x @ wq).reshape(B, Sq, H, Dh), 0, 2, 1, 3)
        scores = torch.einsum("bhqd,bhkd->bhqk", q, k_cache) * (Dh ** -0.5)
        p = _softmax(scores, axis=-1)
        o = torch.einsum("bhqk,bhkd->bhqd", p, v_cache)
        return (lambda x, *d: x.permute(*d))(o, 0, 2, 1, 3).reshape(B, Sq, H * Dh) @ wo

    a = _A_ref(A_x, A_k_cache, A_v_cache, A_wq, A_wo)
    b = _B_ref(B_x, B_k_cache, B_v_cache, B_wq, B_wo)
    return torch.concatenate([a, b], axis=-1)
```

```python
NAME = "concat_heads__gqa_block_cached__mha_block_cached__near_ridge"

HEADER = """; Kernarg layout for this problem (104 bytes, ptrs only, base s[0:1]):
"""

class Asm:
    def __init__(self):
        self.lines = []
        self.nlabel = 0
    def __call__(self, s):
        for l in s.split("\n"):
            l = l.rstrip()
            if l.strip() == "":
                continue
            if l.strip().endswith(":") and not l.strip().startswith(";"):
                self.lines.append(l.strip())
            else:
                self.lines.append(" " + l.strip())
    def label(self, prefix="L"):
        self.nlabel += 1
        return f"{prefix}_{self.nlabel}"
    def text(self):
        return "\n".join(self.lines) + "\n"

def kernel_text(name, body, vgpr=256, sgpr=102, accum=None):
    if accum is None:
        accum = min(256, (vgpr + 3) // 4 * 4)
    return f""".text
.globl {name}
.p2align 8
.type {name},@function
{name}:
{body}
.section .rodata,"a"
.p2align 6
.amdhsa_kernel {name}
  .amdhsa_next_free_vgpr {vgpr}
  .amdhsa_next_free_sgpr {sgpr}
  .amdhsa_accum_offset {accum}
  .amdhsa_group_segment_fixed_size 0
  .amdhsa_kernarg_size 104
  .amdhsa_user_sgpr_count 2
  .amdhsa_user_sgpr_kernarg_segment_ptr 1
  .amdhsa_system_sgpr_workgroup_id_x 1
.end_amdhsa_kernel
"""

def write_file(path, kernels, single=False):
    out = HEADER
    if single or (len(kernels) == 1 and kernels[0]["name"] == NAME + "_kernel"):
        k = kernels[0]
        out += f"; @launch grid=({k['grid']},1,1) block=({k['block']},1,1) lds={k['lds']}\n"
    else:
        for k in kernels:
            out += f"; @launch kernel={k['name']} grid=({k['grid']},1,1) block=({k['block']},1,1) lds={k['lds']}\n"
    out += '.amdgcn_target "amdgcn-amd-amdhsa--gfx950"\n'
    seen = set()
    for k in kernels:
        if k["name"] in seen:
            continue
        seen.add(k["name"])
        out += kernel_text(k["name"], k["body"], k.get("vgpr", 256), k.get("sgpr", 102), k.get("accum"))
    open(path, "w").write(out)
```

```python
import sys, math, struct
from asmlib import *

def f2u(f):
    return struct.unpack("<I", struct.pack("<f", f))[0]

QSCALE = (128 ** -0.5) * math.log2(math.e)
THRESH = 8.0

WS_O = 0
WS_O_BYTES = 512 * 24576
WS_P = 16 << 20
WS_P_BYTES = 512 * 30720

class Cnt:
    def __init__(self, a, name, maxv):
        self.a = a; self.name = name; self.q = []; self.maxv = maxv
    def issue(self, tag, n=1):
        for _ in range(n):
            self.q.append(tag)
        assert len(self.q) <= self.maxv, (self.name, len(self.q))
    def wait(self, tag):
        idx = max(i for i, t in enumerate(self.q) if t == tag) if tag in self.q else -1
        if idx < 0:
            return
        rem = len(self.q) - 1 - idx
        self.a(f"s_waitcnt {self.name}({rem})")
        self.q = self.q[idx + 1:]
    def waitall(self):
        self.a(f"s_waitcnt {self.name}(0)")
        self.q = []

def vr(b, n):
    return f"v[{b}:{b+n-1}]" if n > 1 else f"v{b}"
def sr(b, n):
    return f"s[{b}:{b+n-1}]" if n > 1 else f"s{b}"

def mfma(a, d, A, B, c):
    cs = "0" if c is None else vr(c, 16)
    a(f"v_mfma_f32_32x32x16_bf16 {vr(d,16)}, {vr(A,4)}, {vr(B,4)}, {cs}")

def make_srd(a, d, ptr, off_sgpr, nbytes_expr):
    if off_sgpr is None:
        a(f"s_mov_b32 s{d}, s{ptr}")
        a(f"s_and_b32 s{d+1}, s{ptr+1}, 0xffff")
    else:
        a(f"s_add_u32 s{d}, s{ptr}, {off_sgpr}")
        a(f"s_addc_u32 s{d+1}, s{ptr+1}, 0")
        a(f"s_and_b32 s{d+1}, s{d+1}, 0xffff")
    a(f"s_mov_b32 s{d+2}, {nbytes_expr}")
    a(f"s_mov_b32 s{d+3}, 0x20000")

def tr_lane_addr(a, vdst, vl, t0, t1, rowmul, pitch, swz):
    a(f"v_bfe_u32 v{t0}, v{vl}, 2, 2")
    a(f"v_lshrrev_b32 v{t1}, 5, v{vl}")
    a(f"v_mul_u32_u24 v{t1}, {rowmul}, v{t1}")
    a(f"v_add_u32 v{t1}, v{t1}, v{t0}")
    a(f"v_mul_u32_u24 v{vdst}, {pitch}, v{t1}")
    if swz:
        a(f"v_lshlrev_b32 v{t0}, 6, v{t0}")
        a(f"v_add_u32 v{vdst}, v{vdst}, v{t0}")
    a(f"v_bfe_u32 v{t0}, v{vl}, 4, 1")
    a(f"v_lshlrev_b32 v{t0}, 5, v{t0}")
    a(f"v_add_u32 v{vdst}, v{vdst}, v{t0}")
    a(f"v_and_b32 v{t0}, 1, v{vl}")
    a(f"v_lshlrev_b32 v{t0}, 4, v{t0}")
    a(f"v_add_u32 v{vdst}, v{vdst}, v{t0}")
    a(f"v_bfe_u32 v{t0}, v{vl}, 1, 1")
    a(f"v_lshlrev_b32 v{t0}, 3, v{t0}")
    a(f"v_add_u32 v{vdst}, v{vdst}, v{t0}")

S_X, S_W, S_K, S_V, S_O = 20, 24, 28, 32, 36
S_WAVE = 40
LW0, LWSZ, LWN = 0, 8192, 5
LX0, LXSZ, LXN = 40960, 12288, 3
LK0, LV0 = 0, 32768
V_O, V_Q, V_SA, V_SB, V_CM, V_P, V_KF, V_VF = 0, 64, 96, 112, 128, 144, 152, 184
V_KA, V_VA, V_L, V_T = 216, 224, 228, 230
V_LANE = 250

def k1(opt):
    a = Asm()
    ntkv = " nt" if opt.get("nt_kv", True) else ""
    ntw = " nt" if opt.get("nt_w", False) else ""
    ntx = " nt" if opt.get("nt_x", False) else ""
    a(f"""
    s_cmp_ge_u32 s2, 512
    s_cbranch_scc1 K1_end
    s_and_b32 s3, s2, 7
    s_lshr_b32 s4, s3, 2           ; branch
    s_mul_i32 s5, s4, 40
    s_load_dwordx8 s[8:15], s[0:1], s5      ; x, k, v, wq
    s_load_dwordx2 s[16:17], s[0:1], 96     ; ws
    s_and_b32 s3, s3, 3
    s_lshr_b32 s6, s2, 3           ; idx
    s_and_b32 s7, s6, 7            ; b
    s_lshr_b32 s6, s6, 3           ; hh
    s_add_u32 s45, s7, s6
    s_and_b32 s45, s45, 7
    s_lshl_b32 s3, s3, 3
    s_add_u32 s6, s6, s3           ; h
    v_lshrrev_b32 v1, 6, v0
    v_and_b32 v{V_LANE}, 63, v0
    v_readfirstlane_b32 s{S_WAVE}, v1
    s_mul_i32 s41, s7, 122880      ; x offset
    s_lshl_b32 s42, s6, 8
    s_lshl_b32 s43, s7, 5
    s_add_u32 s43, s43, s6         ; b*32+h
    s_lshl_b32 s44, s4, 8
    s_add_u32 s44, s44, s43        ; unit
    s_mul_i32 s44, s44, 24576
    s_add_u32 s44, s44, {WS_O}
    s_lshl_b32 s43, s43, 17
    s_sub_u32 s46, {640*8192}, s42
    s_waitcnt lgkmcnt(0)
    """)
    make_srd(a, S_X, 8, "s41", 122880)
    make_srd(a, S_K, 10, "s43", 131072)
    make_srd(a, S_V, 12, "s43", 131072)
    make_srd(a, S_W, 14, "s42", "s46")
    make_srd(a, S_O, 16, "s44", 24576)
    L = V_LANE
    GK, GV = 136, 140
    a(f"""
    v_lshrrev_b32 v1, 4, v{L}           ; l/16
    v_and_b32 v2, 15, v{L}              ; l%16
    v_xor_b32 v3, v2, v1                ; p ^ (l/16)
    v_lshlrev_b32 v3, 4, v3
    v_lshl_add_u32 v{GK}, v1, 8, v3     ; (l/16)*256 + c*16
    v_xor_b32 v{GK+1}, 64, v{GK}
    v_xor_b32 v{GK+2}, 128, v{GK}
    v_xor_b32 v{GK+3}, 192, v{GK}
    v_lshlrev_b32 v3, 2, v1
    v_xor_b32 v3, v2, v3                ; p ^ 4*(l/16)
    v_lshlrev_b32 v3, 4, v3
    v_lshl_add_u32 v{GV}, v1, 8, v3
    s_cmp_eq_u32 s{S_WAVE}, 3
    s_cbranch_scc1 K1_loader
    """)
    a(f"s_lshl_b32 s47, s{S_WAVE}, 13")
    a(f"s_add_u32 s48, s47, 4096")
    if opt.get("pf_delay", 0):
        a(f"s_sleep {opt['pf_delay']}")
    for i in range(8):
        so = "s47" if i < 4 else "s48"
        a(f"buffer_load_dwordx4 {vr(V_KF+4*i,4)}, v{GK+i%4}, {sr(S_K,4)}, {so} offen offset:{(i%4)*1024}{ntkv}")
    for i in range(8):
        so = "s47" if i < 4 else "s48"
        a(f"buffer_load_dwordx4 {vr(V_VF+4*i,4)}, v{GV}, {sr(S_V,4)}, {so} offen offset:{(i%4)*1024}{ntkv}")
    WB, WC, XB, XC = 230, 234, 238, 242
    tr_lane_addr(a, WB, L, 1, 2, 8, 256, True)
    for t in range(1, 4):
        a(f"v_xor_b32 v{WB+t}, {64*t}, v{WB}")
    a(f"""
    v_and_b32 v1, 31, v{L}              ; j
    v_lshrrev_b32 v2, 5, v{L}           ; h
    v_bfe_u32 v3, v1, 1, 3              ; (j/2)%8
    v_xor_b32 v2, v2, v3
    v_lshlrev_b32 v2, 4, v2
    v_lshl_add_u32 v2, v1, 7, v2
    s_lshl_b32 s49, s{S_WAVE}, 12       ; w*32*128
    v_add_u32 v{XB}, s49, v2
    v_xor_b32 v{XB+1}, 32, v{XB}
    v_xor_b32 v{XB+2}, 64, v{XB}
    v_xor_b32 v{XB+3}, 96, v{XB}
    """)
    a(f"""
    v_and_b32 v1, 31, v{L}              ; i
    v_lshrrev_b32 v2, 5, v{L}           ; h
    v_and_b32 v3, 15, v1
    v_xor_b32 v2, v2, v3
    v_lshlrev_b32 v2, 4, v2
    v_lshl_add_u32 v{V_KA}, v1, 8, v2
    """)
    for s in range(1, 8):
        a(f"v_xor_b32 v{V_KA+s}, {32*s}, v{V_KA}")
    tr_lane_addr(a, V_VA, L, 1, 2, 4, 256, True)
    a(f"v_add_u32 v{V_VA}, {LV0}, v{V_VA}")
    for t in range(1, 4):
        a(f"v_xor_b32 v{V_VA+t}, {64*t}, v{V_VA}")
    for i in range(64):
        a(f"v_mov_b32 v{V_O+i}, 0")
    AF, BF = 96, 128
    a(f"""
    s_mov_b32 s50, {LW0}
    s_mov_b32 s51, {LX0}
    s_mov_b32 s52, 0
    K1_qloop:
    """)
    for half in range(2):
        for t in range(4):
            a(f"v_add_u32 v{WC+t}, s50, v{WB+t}")
        a(f"v_add_u32 v{XC}, s51, v{XB+2*half}")
        a(f"v_add_u32 v{XC+1}, s51, v{XB+2*half+1}")
        a("s_barrier")
        c = Cnt(a, "lgkmcnt", 15)
        def rdB(ks):
            a(f"ds_read_b128 {vr(BF+4*ks,4)}, v{XC+ks}")
            c.issue(("B", ks))
        def rdA(ks, t):
            r = AF + 16 * ks + 4 * t
            a(f"ds_read_b64_tr_b16 {vr(r,2)}, v{WC+t} offset:{ks*4096}")
            a(f"ds_read_b64_tr_b16 {vr(r+2,2)}, v{WC+t} offset:{ks*4096+1024}")
            c.issue(("A", ks, t), 2)
        rdB(0)
        for t in range(4): rdA(0, t)
        rdB(1); rdA(1, 0); rdA(1, 1)
        pend = [(1, 2), (1, 3)]
        for ks in range(2):
            for t in range(4):
                c.wait(("A", ks, t))
                mfma(a, V_O + 16 * t, AF + 16 * ks + 4 * t, BF + 4 * ks, V_O + 16 * t)
                if pend:
                    rdA(*pend.pop(0))
        a(f"""
        s_add_u32 s50, s50, {LWSZ}
        s_cmp_ge_u32 s50, {LW0+LWSZ*LWN}
        s_cselect_b32 s50, {LW0}, s50
        """)
    a(f"""
    s_add_u32 s51, s51, {LXSZ}
    s_cmp_ge_u32 s51, {LX0+LXSZ*LXN}
    s_cselect_b32 s51, {LX0}, s51
    s_add_u32 s52, s52, 1
    s_cmp_lt_u32 s52, 10
    s_cbranch_scc1 K1_qloop
    s_barrier
    """)
    a(f"""
    v_lshlrev_b32 v141, 4, v{L}
    v_add_u32 v141, s47, v141          ; w*8192 + lane*16
    s_waitcnt vmcnt(8)
    """)
    for i in range(8):
        a(f"ds_write_b128 v141, {vr(V_KF+4*i,4)} offset:{LK0+i*1024}")
    a("s_waitcnt vmcnt(0)")
    for i in range(8):
        a(f"ds_write_b128 v141, {vr(V_VF+4*i,4)} offset:{LV0+i*1024}")
    a(f"s_mov_b32 s53, {hex(f2u(QSCALE))}")
    for i in range(64):
        a(f"v_mul_f32 v{V_O+i}, s53, v{V_O+i}")
    for i in range(32):
        a(f"v_cvt_pk_bf16_f32 v{V_Q+i}, v{V_O+2*i}, v{V_O+2*i+1}")
    for i in range(64):
        a(f"v_mov_b32 v{V_O+i}, 0")
    a(f"""
    v_mov_b32 v{V_L}, 0
    v_mov_b32 v{V_L+1}, 0
    s_mov_b32 s54, {hex(f2u(THRESH))}
    s_waitcnt lgkmcnt(0)
    s_barrier                     ; B_-1
    """)
    T = V_T
    def maxtree(S, emit):
        emit(f"v_max3_f32 v{T}, v{S}, v{S+1}, v{S+2}")
        emit(f"v_max3_f32 v{T+1}, v{S+3}, v{S+4}, v{S+5}")
        emit(f"v_max3_f32 v{T+2}, v{S+6}, v{S+7}, v{S+8}")
        emit(f"v_max3_f32 v{T+3}, v{S+9}, v{S+10}, v{S+11}")
        emit(f"v_max3_f32 v{T+4}, v{S+12}, v{S+13}, v{S+14}")
        emit(f"v_max3_f32 v{T}, v{T}, v{T+1}, v{S+15}")
        emit(f"v_max3_f32 v{T+2}, v{T+2}, v{T+3}, v{T+4}")
        emit(f"v_max_f32 v{T}, v{T}, v{T+2}")
    c = Cnt(a, "lgkmcnt", 15)
    for s in range(8):
        a(f"ds_read_b128 {vr(V_KF+4*s,4)}, v{V_KA+s} offset:{LK0}")
        c.issue(("K", s))
    for s in range(8):
        c.wait(("K", s))
        mfma(a, V_SA, V_KF + 4 * s, V_Q + 4 * s, None if s == 0 else V_SA)
    a("s_nop 12")
    maxtree(V_SA, a)
    a(f"""
    v_mov_b32 v{T+1}, v{T}
    s_nop 1
    v_permlane32_swap_b32 v{T}, v{T+1}
    v_max_f32 v{T}, v{T}, v{T+1}
    """)
    for i in range(16):
        a(f"v_sub_f32 v{V_SA+i}, v{V_SA+i}, v{T}")
    for i in range(16):
        a(f"v_sub_f32 v{V_CM+i}, 0, v{T}")
    a(f"""
    s_mov_b32 s52, 0
    K1_aloop:
    """)
    rare = []
    for j in range(4):
        Scur, Snxt = (V_SA, V_SB) if j % 2 == 0 else (V_SB, V_SA)
        kreg = LK0 + ((j + 1) % 4) * 8192
        vreg = (j % 4) * 8192
        last = (j == 3)
        lab_noqk = f"K1_last"
        a("s_barrier")
        def step(do_qk):
            c = Cnt(a, "lgkmcnt", 15)
            ex = []
            def half_ops(u):
                ops = []
                b = Scur + 8 * u
                for i in range(8):
                    ops.append(f"v_exp_f32 v{b+i}, v{b+i}")
                seq = []
                seq += [ops[0], ops[1]]
                for i in range(2, 8):
                    seq.append(ops[i])
                    seq.append(f"v_add_f32 v{V_L+(i%2)}, v{V_L+(i%2)}, v{b+i-2}")
                    if i % 2 == 1:
                        seq.append(f"v_cvt_pk_bf16_f32 v{V_P+4*u+(i-3)//2}, v{b+i-3}, v{b+i-2}")
                seq.append(f"v_add_f32 v{V_L}, v{V_L}, v{b+6}")
                seq.append(f"v_add_f32 v{V_L+1}, v{V_L+1}, v{b+7}")
                seq.append(f"v_cvt_pk_bf16_f32 v{V_P+4*u+3}, v{b+6}, v{b+7}")
                return seq
            q0 = half_ops(0); q1 = half_ops(1)
            def rdV(i):
                u, t = divmod(i, 4)
                r = V_VF + 4 * i
                a(f"ds_read_b64_tr_b16 {vr(r,2)}, v{V_VA+t} offset:{vreg+u*4096}")
                a(f"ds_read_b64_tr_b16 {vr(r+2,2)}, v{V_VA+t} offset:{vreg+u*4096+2048}")
                c.issue(("V", i), 2)
            fill = q0 + q1
            def emit_fill(n):
                for _ in range(n):
                    if fill:
                        a(fill.pop(0))
            if do_qk:
                for s in range(8):
                    a(f"ds_read_b128 {vr(V_KF+4*s,4)}, v{V_KA+s} offset:{kreg}")
                    c.issue(("K", s))
                emit_fill(8)
                for s in range(8):
                    c.wait(("K", s))
                    mfma(a, Snxt, V_KF + 4 * s, V_Q + 4 * s, V_CM if s == 0 else Snxt)
                    if s < 7:
                        rdV(s)
                    emit_fill(3)
            else:
                for i in range(7):
                    rdV(i)
                emit_fill(len(q0))
            while len(fill) > len(q1):
                emit_fill(1)
            mx = []
            if do_qk:
                maxtree(Snxt, mx.append)
            a("s_nop 1")
            for i in range(8):
                u, t = divmod(i, 4)
                if i == 4:
                    emit_fill(len(fill))
                    a("s_nop 1")
                c.wait(("V", i))
                mfma(a, V_O + 16 * t, V_VF + 4 * i, V_P + 4 * u, V_O + 16 * t)
                if i == 0:
                    rdV(7)
                if i < 4:
                    emit_fill(4)
                else:
                    for _ in range(2):
                        if mx: a(mx.pop(0))
            if do_qk:
                assert not mx
                lr = a.label("K1_rare"); lb = a.label("K1_back")
                a(f"v_cmp_lt_f32 vcc, s54, v{T}")
                a(f"s_cbranch_vccnz {lr}")
                a(f"{lb}:")
                rare.append((lr, lb, Snxt))
        if last:
            a("s_cmp_eq_u32 s52, 3")
            a(f"s_cbranch_scc1 {lab_noqk}")
        step(True)
        if last:
            a(f"""
            s_add_u32 s52, s52, 1
            s_branch K1_aloop
            {lab_noqk}:
            """)
            step(False)
    a(f"""
    v_add_f32 v{V_L}, v{V_L}, v{V_L+1}
    v_lshlrev_b32 v141, 4, v{L}
    v_mov_b32 v{V_L+1}, v{V_L}
    s_mul_i32 s55, s{S_WAVE}, 8192
    s_add_u32 s56, s55, 4096
    v_permlane32_swap_b32 v{V_L}, v{V_L+1}
    v_add_f32 v{V_L}, v{V_L}, v{V_L+1}
    v_rcp_f32 v{V_L}, v{V_L}
    s_nop 8
    """)
    ost = opt.get("o_store", "")
    for f in range(8):
        t, u = divmod(f, 2)
        b = V_O + 16 * t + 8 * u
        for i in range(8):
            a(f"v_mul_f32 v{b+i}, v{b+i}, v{V_L}")
        d = V_KF + 4 * f
        for i in range(4):
            a(f"v_cvt_pk_bf16_f32 v{d+i}, v{b+2*i}, v{b+2*i+1}")
        so = "s55" if f < 4 else "s56"
        a(f"buffer_store_dwordx4 {vr(d,4)}, v141, {sr(S_O,4)}, {so} offen offset:{(f%4)*1024}{ost}")
    a("s_endpgm")
    for lr, lb, S in rare:
        a(f"""
        {lr}:
        v_mov_b32 v{T+1}, v{T}
        s_nop 1
        v_permlane32_swap_b32 v{T}, v{T+1}
        v_max_f32 v{T}, v{T}, v{T+1}
        v_max_f32 v{T}, 0, v{T}           ; delta >= 0
        v_sub_f32 v{T+1}, 0, v{T}
        v_exp_f32 v{T+1}, v{T+1}          ; 2^-delta
        s_nop 12
        """)
        for i in range(16):
            a(f"v_sub_f32 v{S+i}, v{S+i}, v{T}")
        for i in range(16):
            a(f"v_sub_f32 v{V_CM+i}, v{V_CM+i}, v{T}")
        a(f"v_mul_f32 v{V_L}, v{V_L}, v{T+1}")
        a(f"v_mul_f32 v{V_L+1}, v{V_L+1}, v{T+1}")
        for i in range(64):
            a(f"v_mul_f32 v{V_O+i}, v{V_O+i}, v{T+1}")
        a(f"s_branch {lb}")

    GW, GX = 4, 8
    a(f"""
    K1_loader:
    v_lshrrev_b32 v1, 4, v{L}           ; l/16
    v_and_b32 v2, 15, v{L}
    v_lshlrev_b32 v3, 2, v1
    v_xor_b32 v3, v2, v3                ; c = p ^ 4*(l/16)
    v_lshlrev_b32 v3, 4, v3
    v_lshl_add_u32 v{GW}, v1, 13, v3    ; (l/16)*8192 + c*16
    v_add_u32 v{GW+1}, {1*(32768-1024)}, v{GW}
    v_add_u32 v{GW+2}, {2*(32768-1024)}, v{GW}
    v_add_u32 v{GW+3}, {3*(32768-1024)}, v{GW}
    v_lshrrev_b32 v2, 3, v{L}           ; l/8
    v_and_b32 v3, 7, v{L}
    v_xor_b32 v3, v3, v1                ; (l%8) ^ (l/16)
    v_lshlrev_b32 v3, 4, v3
    v_mul_u32_u24 v2, 1280, v2
    v_add_u32 v{GX}, v2, v3
    v_xor_b32 v3, 64, v3
    v_add_u32 v{GX+1}, v2, v3
    v_add_u32 v{GX+2}, {2*(10240-1024)}, v{GX}
    v_add_u32 v{GX+3}, {3*(10240-1024)}, v{GX+1}
    v_add_u32 v{GX+1}, {1*(10240-1024)}, v{GX+1}
    s_mov_b32 s50, {LW0}
    s_mov_b32 s51, {LX0}
    """)
    def issueX():
        for gi in range(3):
            a(f"s_add_u32 m0, s51, {gi*4096}")
            a(f"s_lshl_b32 s57, s45, 7")
            if gi:
                a(f"s_add_u32 s57, s57, {gi*40960}")
            for j in range(4):
                a(f"buffer_load_dwordx4 v{GX+j}, {sr(S_X,4)}, s57 offen offset:{j*1024}{ntx} lds")
        a(f"""
        s_add_u32 s51, s51, {LXSZ}
        s_cmp_ge_u32 s51, {LX0+LXSZ*LXN}
        s_cselect_b32 s51, {LX0}, s51
        """)
    def issueW(half):
        for gi in range(2):
            a(f"s_add_u32 m0, s50, {gi*4096}")
            a(f"s_lshl_b32 s57, s45, 19")
            if half or gi:
                a(f"s_add_u32 s57, s57, {half*262144+gi*131072}")
            for j in range(4):
                a(f"buffer_load_dwordx4 v{GW+j}, {sr(S_W,4)}, s57 offen offset:{j*1024}{ntw} lds")
        a(f"""
        s_add_u32 s50, s50, {LWSZ}
        s_cmp_ge_u32 s50, {LW0+LWSZ*LWN}
        s_cselect_b32 s50, {LW0}, s50
        """)
    def nextP():
        a(f"""
        s_add_u32 s45, s45, 1
        s_cmp_ge_u32 s45, 10
        s_cselect_b32 s45, 0, s45
        """)
    for i in range(2):
        issueX(); issueW(0); issueW(1); nextP()
    a(f"""
    s_mov_b32 s52, 0
    K1_lq:
    s_waitcnt vmcnt(36)
    s_barrier
    """)
    issueX(); issueW(0)
    a("s_waitcnt vmcnt(48)")
    a("s_barrier")
    issueW(1); nextP()
    a(f"""
    s_add_u32 s52, s52, 1
    s_cmp_lt_u32 s52, 8
    s_cbranch_scc1 K1_lq
    s_waitcnt vmcnt(36)
    s_barrier
    s_waitcnt vmcnt(28)
    s_barrier
    s_waitcnt vmcnt(8)
    s_barrier
    s_waitcnt vmcnt(0)
    s_barrier
    s_barrier                    ; QE
    """)
    def issueKV(srd, g, lds0, tile_sgpr, is_k):
        a(f"s_and_b32 s58, {tile_sgpr}, 3")
        a(f"s_lshl_b32 s58, s58, 13")
        a(f"s_lshl_b32 s57, {tile_sgpr}, 13")
        for gi in range(2):
            a(f"s_add_u32 m0, s58, {lds0+gi*4096}")
            if gi:
                a(f"s_add_u32 s57, s57, 4096")
            else:
                a("s_nop 0")
            for j in range(4):
                gg = g + j if is_k else g
                a(f"buffer_load_dwordx4 v{gg}, {sr(srd,4)}, s57 offen offset:{j*1024}{ntkv} lds")
    a("s_mov_b32 s59, 3")
    issueKV(S_K, GK, LK0, "s59", True)
    issueKV(S_V, GV, LV0, "s59", False)
    a("s_barrier                  ; B_-1")
    a("s_barrier                  ; B_0")
    a("s_mov_b32 s59, 4")
    issueKV(S_K, GK, LK0, "s59", True)
    a("s_barrier                  ; B_1")
    a("s_mov_b32 s59, 5")
    a("s_mov_b32 s60, 4")
    issueKV(S_K, GK, LK0, "s59", True)
    issueKV(S_V, GV, LV0, "s60", False)
    a("s_waitcnt vmcnt(32)")
    a("s_barrier                  ; B_2")
    a("s_mov_b32 s59, 6")
    a("s_mov_b32 s60, 5")
    issueKV(S_K, GK, LK0, "s59", True)
    issueKV(S_V, GV, LV0, "s60", False)
    a(f"""
    K1_la:
    s_waitcnt vmcnt(32)
    s_barrier                  ; B_t, t=3..11
    s_add_u32 s59, s59, 1
    s_add_u32 s60, s60, 1
    """)
    issueKV(S_K, GK, LK0, "s59", True)
    issueKV(S_V, GV, LV0, "s60", False)
    a(f"""
    s_cmp_lt_u32 s59, 15
    s_cbranch_scc1 K1_la
    s_waitcnt vmcnt(32)
    s_barrier                  ; B_12
    s_mov_b32 s60, 15
    """)
    issueKV(S_V, GV, LV0, "s60", False)
    a(f"""
    s_waitcnt vmcnt(24)
    s_barrier                  ; B_13
    s_waitcnt vmcnt(8)
    s_barrier                  ; B_14
    s_waitcnt vmcnt(0)
    s_barrier                  ; B_15
    K1_end:
    s_endpgm
    """)
    return dict(name="k1_kernel", body=a.text(), grid=512, block=256, lds=81920, vgpr=256, sgpr=96)

def k2(opt):
    a = Asm()
    S_OO, S_WO, S_PP = 20, 24, 28
    L = 250
    a(f"""
    s_cmp_ge_u32 s2, 512
    s_cbranch_scc1 K2_end
    s_and_b32 s3, s2, 7
    s_lshr_b32 s4, s3, 2           ; branch
    s_mul_i32 s5, s4, 40
    s_load_dwordx2 s[8:9], s[0:1], s5 offset:32     ; wo
    s_load_dwordx2 s[16:17], s[0:1], 96     ; ws
    s_and_b32 s3, s3, 3            ; octet
    s_lshr_b32 s6, s2, 3           ; idx
    s_and_b32 s7, s6, 7            ; b
    s_lshr_b32 s6, s6, 3           ; hh
    s_and_b32 s10, s6, 3           ; c
    s_lshr_b32 s6, s6, 2           ; qh
    s_lshl_b32 s3, s3, 1
    s_add_u32 s3, s3, s6
    v_lshrrev_b32 v1, 6, v0
    v_and_b32 v{L}, 63, v0
    v_readfirstlane_b32 s{S_WAVE}, v1
    s_lshl_b32 s41, s4, 8
    s_lshl_b32 s42, s7, 5
    s_add_u32 s41, s41, s42
    s_lshl_b32 s42, s3, 2
    s_add_u32 s41, s41, s42
    s_mul_i32 s41, s41, 24576
    s_add_u32 s41, s41, {WS_O}
    s_mul_i32 s42, s3, {512*1280}
    s_mul_i32 s43, s10, 320
    s_add_u32 s42, s42, s43
    s_sub_u32 s43, {512*1280}, s43
    s_lshl_b32 s44, s4, 3
    s_add_u32 s44, s44, s7
    s_lshl_b32 s44, s44, 2
    s_add_u32 s44, s44, s10
    s_lshl_b32 s44, s44, 3
    s_add_u32 s44, s44, s3
    s_mul_i32 s44, s44, 30720
    s_add_u32 s44, s44, {WS_P}
    s_waitcnt lgkmcnt(0)
    """)
    make_srd(a, S_OO, 16, "s41", 4 * 24576)
    make_srd(a, S_WO, 8, "s42", "s43")
    make_srd(a, S_PP, 16, "s44", 30720)
    a(f"""
    s_cmp_eq_u32 s{S_WAVE}, 3
    s_cbranch_scc1 K2_loader
    """)
    ACC, BF, AF = 0, 80, 208
    VA, VC, VL16 = 248, 249, 251
    a(f"v_lshlrev_b32 v{VL16}, 4, v{L}")
    a(f"s_lshl_b32 s47, s{S_WAVE}, 13")
    vm = Cnt(a, "vmcnt", 63)
    for j in range(4):
        for gi in range(2):
            a(f"s_add_u32 s48, s47, {j*24576+gi*4096}")
            for f in range(4):
                a(f"buffer_load_dwordx4 {vr(BF+4*(8*j+4*gi+f),4)}, v{VL16}, {sr(S_OO,4)}, s48 offen offset:{f*1024}")
                vm.issue(("B", 8 * j + 4 * gi + f))
    tr_lane_addr(a, VA, L, 1, 2, 8, 320, False)
    for i in range(80):
        a(f"v_mov_b32 v{ACC+i}, 0")
    for ch in range(16):
        a(f"v_add_u32 v{VC}, {(ch%8)*10240}, v{VA}")
        a("s_barrier")
        c = Cnt(a, "lgkmcnt", 15)
        order = [(ks, nt) for ks in range(2) for nt in range(5)]
        def rdA(ks, nt):
            r = AF + 4 * (5 * ks + nt)
            a(f"ds_read_b64_tr_b16 {vr(r,2)}, v{VC} offset:{ks*5120+nt*64}")
            a(f"ds_read_b64_tr_b16 {vr(r+2,2)}, v{VC} offset:{ks*5120+nt*64+1280}")
            c.issue((ks, nt), 2)
        for o in order[:7]:
            rdA(*o)
        pend = order[7:]
        for ks, nt in order:
            if nt == 0:
                vm.wait(("B", 2 * ch + ks))
            c.wait((ks, nt))
            mfma(a, ACC + 16 * nt, AF + 4 * (5 * ks + nt), BF + 4 * (2 * ch + ks), ACC + 16 * nt)
            if pend:
                rdA(*pend.pop(0))
    a("s_nop 12")
    a(f"s_mul_i32 s55, s{S_WAVE}, 10240")
    for f in range(10):
        b = ACC + 8 * f
        d = BF + 4 * f
        for i in range(4):
            a(f"v_cvt_pk_bf16_f32 v{d+i}, v{b+2*i}, v{b+2*i+1}")
        if f % 4 == 0 and f:
            a(f"s_add_u32 s55, s55, 4096")
        a(f"buffer_store_dwordx4 {vr(d,4)}, v{VL16}, {sr(S_PP,4)}, s55 offen offset:{(f%4)*1024}")
    a("s_endpgm")
    G = 4
    a("K2_loader:")
    a("s_movk_i32 s49, 3277")
    for i in range(5):
        a(f"""
        v_add_u32 v1, {64*i}, v{L}          ; n
        v_mul_u32_u24 v2, s49, v1
        v_lshrrev_b32 v2, 16, v2            ; row
        v_mul_u32_u24 v3, 20, v2
        v_sub_u32 v3, v1, v3                ; g
        v_mul_u32_u24 v2, 1280, v2
        v_lshl_add_u32 v{G+i}, v3, 4, v2
        """)
        if 0 < i < 4:
            a(f"v_subrev_u32 v{G+i}, {1024*i}, v{G+i}")
    def issue():
        for grp in range(2):
            a(f"s_add_u32 m0, s50, {grp*5120}")
            a(f"s_add_u32 s57, s51, {grp*16*1280}")
            for i in range(4):
                a(f"buffer_load_dwordx4 v{G+i}, {sr(S_WO,4)}, s57 offen offset:{i*1024} lds")
            a(f"s_add_u32 m0, s50, {grp*5120+4096}")
            a("s_nop 0")
            a(f"buffer_load_dwordx4 v{G+4}, {sr(S_WO,4)}, s57 offen lds")
        a(f"""
        s_add_u32 s50, s50, 10240
        s_cmp_ge_u32 s50, 81920
        s_cselect_b32 s50, 0, s50
        s_add_u32 s51, s51, {32*1280}
        """)
    a("s_mov_b32 s50, 0")
    a("s_mov_b32 s51, 0")
    a("s_mov_b32 s52, 0")
    a("K2_l0:")
    issue()
    a(f"""
    s_add_u32 s52, s52, 1
    s_cmp_lt_u32 s52, 6
    s_cbranch_scc1 K2_l0
    K2_l1:
    s_waitcnt vmcnt(50)
    s_barrier
    """)
    issue()
    a(f"""
    s_add_u32 s52, s52, 1
    s_cmp_lt_u32 s52, 16
    s_cbranch_scc1 K2_l1
    """)
    for r in (50, 40, 30, 20, 10, 0):
        a(f"s_waitcnt vmcnt({r})")
        a("s_barrier")
    a("""
    K2_end:
    s_endpgm
    """)
    return dict(name="k2_kernel", body=a.text(), grid=512, block=256, lds=81920, vgpr=256, sgpr=96)

def k3(opt):
    a = Asm()
    a(f"""
    s_cmp_ge_u32 s2, 480
    s_cbranch_scc1 K3_end
    s_load_dwordx2 s[8:9], s[0:1], 80      ; out
    s_load_dwordx2 s[16:17], s[0:1], 96     ; ws
    v_lshrrev_b32 v1, 6, v0
    v_and_b32 v2, 63, v0
    v_readfirstlane_b32 s3, v1
    s_lshl_b32 s4, s2, 2
    s_add_u32 s4, s4, s3          ; W
    s_mul_i32 s5, s4, 2185
    s_lshr_b32 s5, s5, 16         ; rest = W/30  (W<1920)
    s_mul_i32 s6, s5, 30
    s_sub_u32 s6, s4, s6          ; W%30 = w*10+f
    s_mul_i32 s7, s6, 26
    s_lshr_b32 s7, s7, 8          ; w = /10
    s_mul_i32 s10, s7, 10
    s_sub_u32 s10, s6, s10        ; f
    s_mul_i32 s11, s5, {8*30720}
    s_lshl_b32 s12, s6, 10
    s_add_u32 s11, s11, s12
    s_add_u32 s11, s11, {WS_P}
    s_and_b32 s12, s5, 3          ; c
    s_lshr_b32 s13, s5, 2
    s_and_b32 s14, s13, 7         ; b
    s_lshr_b32 s13, s13, 3        ; br
    s_mul_i32 s14, s14, 96
    s_lshl_b32 s15, s7, 5
    s_add_u32 s14, s14, s15
    s_mul_i32 s14, s14, 2560
    s_mul_i32 s13, s13, 1280
    s_add_u32 s14, s14, s13
    s_mul_i32 s12, s12, 320
    s_add_u32 s14, s14, s12
    s_lshl_b32 s12, s10, 5
    s_add_u32 s14, s14, s12       ; + f*32 bytes
    v_lshlrev_b32 v3, 4, v2       ; lane*16
    v_and_b32 v4, 31, v2
    v_mul_u32_u24 v4, 2560, v4
    v_lshrrev_b32 v5, 5, v2
    v_lshl_add_u32 v4, v5, 4, v4
    s_waitcnt lgkmcnt(0)
    """)
    make_srd(a, 20, 16, "s11", 8 * 30720)
    make_srd(a, 24, 8, None, 8 * 96 * 2560)
    a("s_mov_b32 s30, 0")
    for g in range(8):
        a(f"buffer_load_dwordx4 {vr(8+4*g,4)}, v3, s[20:23], s30 offen")
        if g < 7:
            a("s_add_u32 s30, s30, 30720")
    A = 40
    for g in range(8):
        a(f"s_waitcnt vmcnt({7-g})")
        for i in range(4):
            r = 8 + 4 * g + i
            if g == 0:
                a(f"v_lshlrev_b32 v{A+2*i}, 16, v{r}")
                a(f"v_and_b32 v{A+2*i+1}, 0xffff0000, v{r}")
            else:
                a(f"v_lshlrev_b32 v6, 16, v{r}")
                a(f"v_and_b32 v7, 0xffff0000, v{r}")
                a(f"v_add_f32 v{A+2*i}, v{A+2*i}, v6")
                a(f"v_add_f32 v{A+2*i+1}, v{A+2*i+1}, v7")
    for i in range(4):
        a(f"v_cvt_pk_bf16_f32 v{48+i}, v{A+2*i}, v{A+2*i+1}")
    a("buffer_store_dwordx4 v[48:51], v4, s[24:27], s14 offen")
    a("""
    K3_end:
    s_endpgm
    """)
    return dict(name="k3_kernel", body=a.text(), grid=480, block=256, lds=0, vgpr=56, sgpr=40)

if __name__ == "__main__":
    import json
    out = sys.argv[1] if len(sys.argv) > 1 else "v1.s"
    opt = json.loads(sys.argv[2]) if len(sys.argv) > 2 else {}
    ks = []
    which = opt.get("kernels", "123")
    if "1" in which: ks.append(k1(opt))
    if "2" in which: ks.append(k2(opt))
    if "3" in which: ks.append(k3(opt))
    write_file(out, ks)
```

```python
import sys, math, struct
from asmlib import *

def f2u(f):
    return struct.unpack("<I", struct.pack("<f", f))[0]

QSCALE = (128 ** -0.5) * math.log2(math.e)
THRESH = 8.0

WS_O = 0
WS_O_BYTES = 512 * 24576
WS_P = 16 << 20
WS_P_BYTES = 512 * 30720

class Cnt:
    def __init__(self, a, name, maxv):
        self.a = a; self.name = name; self.q = []; self.maxv = maxv
    def issue(self, tag, n=1):
        for _ in range(n):
            self.q.append(tag)
        assert len(self.q) <= self.maxv, (self.name, len(self.q))
    def wait(self, tag):
        idx = max(i for i, t in enumerate(self.q) if t == tag) if tag in self.q else -1
        if idx < 0:
            return
        rem = len(self.q) - 1 - idx
        self.a(f"s_waitcnt {self.name}({rem})")
        self.q = self.q[idx + 1:]
    def waitall(self):
        self.a(f"s_waitcnt {self.name}(0)")
        self.q = []

def vr(b, n):
    return f"v[{b}:{b+n-1}]" if n > 1 else f"v{b}"
def sr(b, n):
    return f"s[{b}:{b+n-1}]" if n > 1 else f"s{b}"

def mfma(a, d, A, B, c):
    cs = "0" if c is None else vr(c, 16)
    a(f"v_mfma_f32_32x32x16_bf16 {vr(d,16)}, {vr(A,4)}, {vr(B,4)}, {cs}")

def make_srd(a, d, ptr, off_sgpr, nbytes_expr):
    if off_sgpr is None:
        a(f"s_mov_b32 s{d}, s{ptr}")
        a(f"s_and_b32 s{d+1}, s{ptr+1}, 0xffff")
    else:
        a(f"s_add_u32 s{d}, s{ptr}, {off_sgpr}")
        a(f"s_addc_u32 s{d+1}, s{ptr+1}, 0")
        a(f"s_and_b32 s{d+1}, s{d+1}, 0xffff")
    a(f"s_mov_b32 s{d+2}, {nbytes_expr}")
    a(f"s_mov_b32 s{d+3}, 0x20000")

def tr_lane_addr(a, vdst, vl, t0, t1, rowmul, pitch, swz):
    a(f"v_bfe_u32 v{t0}, v{vl}, 2, 2")
    a(f"v_lshrrev_b32 v{t1}, 5, v{vl}")
    a(f"v_mul_u32_u24 v{t1}, {rowmul}, v{t1}")
    a(f"v_add_u32 v{t1}, v{t1}, v{t0}")
    a(f"v_mul_u32_u24 v{vdst}, {pitch}, v{t1}")
    if swz:
        a(f"v_lshlrev_b32 v{t0}, 6, v{t0}")
        a(f"v_add_u32 v{vdst}, v{vdst}, v{t0}")
    a(f"v_bfe_u32 v{t0}, v{vl}, 4, 1")
    a(f"v_lshlrev_b32 v{t0}, 5, v{t0}")
    a(f"v_add_u32 v{vdst}, v{vdst}, v{t0}")
    a(f"v_and_b32 v{t0}, 1, v{vl}")
    a(f"v_lshlrev_b32 v{t0}, 4, v{t0}")
    a(f"v_add_u32 v{vdst}, v{vdst}, v{t0}")
    a(f"v_bfe_u32 v{t0}, v{vl}, 1, 1")
    a(f"v_lshlrev_b32 v{t0}, 3, v{t0}")
    a(f"v_add_u32 v{vdst}, v{vdst}, v{t0}")

WS_T = 64 << 20
def stamp_init(a, opt, ws_ptr, wave_sgpr):
    if not opt.get("stamp"): return
    a(f"""
    s_lshl_b32 s88, s2, 2
    s_add_u32 s88, s88, s{wave_sgpr}
    s_lshl_b32 s88, s88, 8
    s_add_u32 s88, s88, {WS_T + opt.get('stamp_base', 0)}
    """)
    make_srd(a, 84, ws_ptr, "s88", 256)
    a(f"""
    s_getreg_b32 s89, hwreg(HW_REG_HW_ID)
    s_getreg_b32 s90, hwreg(HW_REG_XCC_ID)
    v_mov_b32 v252, s89
    v_mov_b32 v253, s90
    v_mov_b32 v254, 0
    buffer_store_dwordx2 v[252:253], v254, s[84:87], 0 offen offset:248
    """)
def stamp(a, opt, idx):
    if not opt.get("stamp"): return
    a(f"""
    s_memrealtime s[92:93]
    s_waitcnt lgkmcnt(0)
    s_mov_b32 s{62+idx}, s92
    """)
def stamp_flush(a, opt, n):
    if not opt.get("stamp"): return
    a("v_mov_b32 v254, 0")
    for i in range(n):
        a(f"v_mov_b32 v252, s{62+i}")
        a(f"buffer_store_dword v252, v254, s[84:87], 0 offen offset:{4*i}")
        a("s_nop 1")

S_X, S_W, S_K, S_V, S_O = 20, 24, 28, 32, 36
S_WAVE = 40
LW0, LWSZ, LWN = 0, 8192, 5
LX0, LXSZ, LXN = 40960, 12288, 3
LK0, LV0 = 0, 32768
V_O, V_Q, V_SA, V_SB, V_CM, V_P, V_KF, V_VF = 0, 64, 96, 112, 128, 144, 152, 184
V_KA, V_VA, V_L, V_T = 216, 224, 228, 230
V_LANE = 250

def k1(opt):
    a = Asm()
    ntkv = " nt" if opt.get("nt_kv", True) else ""
    ntw = " nt" if opt.get("nt_w", False) else ""
    ntx = " nt" if opt.get("nt_x", False) else ""
    a(f"""
    s_cmp_ge_u32 s2, 512
    s_cbranch_scc1 K1_end
    s_and_b32 s3, s2, 7
    s_lshr_b32 s4, s3, 2           ; branch
    s_mul_i32 s5, s4, 40
    s_load_dwordx8 s[8:15], s[0:1], s5      ; x, k, v, wq
    s_load_dwordx2 s[16:17], s[0:1], 96     ; ws
    s_and_b32 s3, s3, 3
    s_lshr_b32 s6, s2, 3           ; idx
    s_and_b32 s7, s6, 7            ; b
    s_lshr_b32 s6, s6, 3           ; hh
    s_add_u32 s45, s7, s6
    s_and_b32 s45, s45, {0 if opt.get("norot") else 7}
    s_lshl_b32 s3, s3, 3
    s_add_u32 s6, s6, s3           ; h
    v_lshrrev_b32 v1, 6, v0
    v_and_b32 v{V_LANE}, 63, v0
    v_readfirstlane_b32 s{S_WAVE}, v1
    s_mul_i32 s41, s7, 122880      ; x offset
    s_lshl_b32 s42, s6, 8
    s_lshl_b32 s43, s7, 5
    s_add_u32 s43, s43, s6         ; b*32+h
    s_lshl_b32 s44, s4, 8
    s_add_u32 s44, s44, s43        ; unit
    s_mul_i32 s44, s44, 24576
    s_add_u32 s44, s44, {WS_O}
    s_lshl_b32 s43, s43, 17
    s_sub_u32 s46, {640*8192}, s42
    s_waitcnt lgkmcnt(0)
    """)
    make_srd(a, S_X, 8, "s41", 122880)
    make_srd(a, S_K, 10, "s43", 131072)
    make_srd(a, S_V, 12, "s43", 131072)
    make_srd(a, S_W, 14, "s42", "s46")
    make_srd(a, S_O, 16, "s44", 24576)
    stamp(a, opt, 0)
    L = V_LANE
    GK, GV = 136, 140
    a(f"""
    v_lshrrev_b32 v1, 4, v{L}           ; l/16
    v_and_b32 v2, 15, v{L}              ; l%16
    v_xor_b32 v3, v2, v1                ; p ^ (l/16)
    v_lshlrev_b32 v3, 4, v3
    v_lshl_add_u32 v{GK}, v1, 8, v3     ; (l/16)*256 + c*16
    v_xor_b32 v{GK+1}, 64, v{GK}
    v_xor_b32 v{GK+2}, 128, v{GK}
    v_xor_b32 v{GK+3}, 192, v{GK}
    v_lshlrev_b32 v3, 2, v1
    v_xor_b32 v3, v2, v3                ; p ^ 4*(l/16)
    v_lshlrev_b32 v3, 4, v3
    v_lshl_add_u32 v{GV}, v1, 8, v3
    s_cmp_eq_u32 s{S_WAVE}, 3
    s_cbranch_scc1 K1_loader
    """)
    a(f"s_lshl_b32 s47, s{S_WAVE}, 13")
    a(f"s_add_u32 s48, s47, 4096")
    pf_ops = []
    for i in range(8):
        so = "s47" if i < 4 else "s48"
        pf_ops.append(f"buffer_load_dwordx4 {vr(V_KF+4*i,4)}, v{GK+i%4}, {sr(S_K,4)}, {so} offen offset:{(i%4)*1024}{ntkv}")
    for i in range(8):
        so = "s47" if i < 4 else "s48"
        pf_ops.append(f"buffer_load_dwordx4 {vr(V_VF+4*i,4)}, v{GV}, {sr(S_V,4)}, {so} offen offset:{(i%4)*1024}{ntkv}")
    if opt.get("no_kvpf"): pf_ops = []
    WB, WC, XB, XC = 230, 234, 238, 242
    tr_lane_addr(a, WB, L, 1, 2, 8, 256, True)
    for t in range(1, 4):
        a(f"v_xor_b32 v{WB+t}, {64*t}, v{WB}")
    a(f"""
    v_and_b32 v1, 31, v{L}              ; j
    v_lshrrev_b32 v2, 5, v{L}           ; h
    v_bfe_u32 v3, v1, 1, 3              ; (j/2)%8
    v_xor_b32 v2, v2, v3
    v_lshlrev_b32 v2, 4, v2
    v_lshl_add_u32 v2, v1, 7, v2
    s_lshl_b32 s49, s{S_WAVE}, 12       ; w*32*128
    v_add_u32 v{XB}, s49, v2
    v_xor_b32 v{XB+1}, 32, v{XB}
    v_xor_b32 v{XB+2}, 64, v{XB}
    v_xor_b32 v{XB+3}, 96, v{XB}
    """)
    a(f"""
    v_and_b32 v1, 31, v{L}              ; i
    v_lshrrev_b32 v2, 5, v{L}           ; h
    v_and_b32 v3, 15, v1
    v_xor_b32 v2, v2, v3
    v_lshlrev_b32 v2, 4, v2
    v_lshl_add_u32 v{V_KA}, v1, 8, v2
    """)
    for s in range(1, 8):
        a(f"v_xor_b32 v{V_KA+s}, {32*s}, v{V_KA}")
    tr_lane_addr(a, V_VA, L, 1, 2, 4, 256, True)
    a(f"v_add_u32 v{V_VA}, {LV0}, v{V_VA}")
    for t in range(1, 4):
        a(f"v_xor_b32 v{V_VA+t}, {64*t}, v{V_VA}")
    for i in range(64):
        a(f"v_mov_b32 v{V_O+i}, 0")
    AFs, BFs = [96, 64], [128, 144]
    a(f"v_add_u32 v{XB}, {LX0}, v{XB}")
    a(f"v_add_u32 v{XB+1}, {LX0}, v{XB+1}")
    a(f"v_add_u32 v{XB+2}, {LX0}, v{XB+2}")
    a(f"v_add_u32 v{XB+3}, {LX0}, v{XB+3}")
    pf_sched = opt.get("pf_sched", [0]*4 + [1]*16)
    for st in range(21):
        if st < 20:
            a("s_barrier")
        reads = []
        if st < 20 and not opt.get("q_nocompute"):
            AF, BF = AFs[st % 2], BFs[st % 2]
            wo_ = LW0 + (st % LWN) * LWSZ
            xo_ = ((st // 2) % LXN) * LXSZ
            for ks in range(2):
                reads.append(f"ds_read_b128 {vr(BF+4*ks,4)}, v{XB+2*(st%2)+ks} offset:{xo_}")
                for t in range(4):
                    r = AF + 16 * ks + 4 * t
                    reads.append(f"ds_read_b64_tr_b16 {vr(r,2)}, v{WB+t} offset:{wo_+ks*4096}")
                    reads.append(f"ds_read_b64_tr_b16 {vr(r+2,2)}, v{WB+t} offset:{wo_+ks*4096+1024}")
        npf = pf_sched[st] if st < 20 else 99
        nrd = 0
        def rd(n):
            nonlocal nrd
            for _ in range(n):
                if reads:
                    a(reads.pop(0)); nrd += 1
                    if nrd == 14:
                        a("s_waitcnt lgkmcnt(10)")
        if st > 0 and not opt.get("q_nocompute"):
            AF, BF = AFs[(st - 1) % 2], BFs[(st - 1) % 2]
            i = 0
            for ks in range(2):
                for t in range(4):
                    mfma(a, V_O + 16 * t, AF + 16 * ks + 4 * t, BF + 4 * ks, V_O + 16 * t)
                    rd(3)
                    i += 1
                    if i == 7:
                        for _ in range(npf):
                            if pf_ops: a(pf_ops.pop(0))
        else:
            rd(99)
            for _ in range(npf):
                if pf_ops: a(pf_ops.pop(0))
        rd(99)
        if st < 20:
            a("s_waitcnt lgkmcnt(0)")
        if st == 19:
            a("s_barrier")
    assert not pf_ops
    stamp(a, opt, 1)
    a(f"""
    v_lshlrev_b32 v141, 4, v{L}
    v_add_u32 v141, s47, v141          ; w*8192 + lane*16
    s_waitcnt vmcnt(8)
    """)
    for i in range(8):
        a(f"ds_write_b128 v141, {vr(V_KF+4*i,4)} offset:{LK0+i*1024}")
    a("s_waitcnt vmcnt(0)")
    for i in range(8):
        a(f"ds_write_b128 v141, {vr(V_VF+4*i,4)} offset:{LV0+i*1024}")
    a(f"s_mov_b32 s53, {hex(f2u(QSCALE))}")
    a("s_nop 7")
    for i in range(64):
        a(f"v_mul_f32 v{V_O+i}, s53, v{V_O+i}")
    for i in range(32):
        a(f"v_cvt_pk_bf16_f32 v{V_Q+i}, v{V_O+2*i}, v{V_O+2*i+1}")
    for i in range(64):
        a(f"v_mov_b32 v{V_O+i}, 0")
    a(f"""
    v_mov_b32 v{V_L}, 0
    v_mov_b32 v{V_L+1}, 0
    s_mov_b32 s54, {hex(f2u(THRESH))}
    s_waitcnt lgkmcnt(0)
    s_barrier                     ; B_-1
    """)
    stamp(a, opt, 2)
    T = V_T
    def maxtree(S, emit):
        emit(f"v_max3_f32 v{T}, v{S}, v{S+1}, v{S+2}")
        emit(f"v_max3_f32 v{T+1}, v{S+3}, v{S+4}, v{S+5}")
        emit(f"v_max3_f32 v{T+2}, v{S+6}, v{S+7}, v{S+8}")
        emit(f"v_max3_f32 v{T+3}, v{S+9}, v{S+10}, v{S+11}")
        emit(f"v_max3_f32 v{T+4}, v{S+12}, v{S+13}, v{S+14}")
        emit(f"v_max3_f32 v{T}, v{T}, v{T+1}, v{S+15}")
        emit(f"v_max3_f32 v{T+2}, v{T+2}, v{T+3}, v{T+4}")
        emit(f"v_max_f32 v{T}, v{T}, v{T+2}")
    c = Cnt(a, "lgkmcnt", 15)
    for s in range(8):
        a(f"ds_read_b128 {vr(V_KF+4*s,4)}, v{V_KA+s} offset:{LK0}")
        c.issue(("K", s))
    for s in range(8):
        c.wait(("K", s))
        mfma(a, V_SA, V_KF + 4 * s, V_Q + 4 * s, None if s == 0 else V_SA)
    a("s_nop 12")
    maxtree(V_SA, a)
    a(f"""
    v_mov_b32 v{T+1}, v{T}
    s_nop 1
    v_permlane32_swap_b32 v{T}, v{T+1}
    v_max_f32 v{T}, v{T}, v{T+1}
    """)
    for i in range(16):
        a(f"v_sub_f32 v{V_SA+i}, v{V_SA+i}, v{T}")
    for i in range(16):
        a(f"v_sub_f32 v{V_CM+i}, 0, v{T}")
    a(f"""
    s_mov_b32 s52, 0
    K1_aloop:
    """)
    if opt.get("stamp"):
        a("""
        s_memrealtime s[92:93]
        s_waitcnt lgkmcnt(0)
        s_cmp_eq_u32 s52, 0
        s_cselect_b32 s65, s92, s65
        s_cmp_eq_u32 s52, 1
        s_cselect_b32 s66, s92, s66
        s_cmp_eq_u32 s52, 2
        s_cselect_b32 s67, s92, s67
        s_cmp_eq_u32 s52, 3
        s_cselect_b32 s68, s92, s68
        """)
    rare = []
    for j in range(4):
        Scur, Snxt = (V_SA, V_SB) if j % 2 == 0 else (V_SB, V_SA)
        kreg = LK0 + ((j + 1) % 4) * 8192
        vreg = (j % 4) * 8192
        last = (j == 3)
        lab_noqk = f"K1_last"
        a("s_barrier")
        def step(do_qk):
            if opt.get("a_nocompute"): return
            c = Cnt(a, "lgkmcnt", 15)
            ex = []
            def half_ops(u):
                ops = []
                b = Scur + 8 * u
                for i in range(8):
                    ops.append(f"v_exp_f32 v{b+i}, v{b+i}")
                seq = []
                seq += [ops[0], ops[1]]
                for i in range(2, 8):
                    seq.append(ops[i])
                    seq.append(f"v_add_f32 v{V_L+(i%2)}, v{V_L+(i%2)}, v{b+i-2}")
                    if i % 2 == 1:
                        seq.append(f"v_cvt_pk_bf16_f32 v{V_P+4*u+(i-3)//2}, v{b+i-3}, v{b+i-2}")
                seq.append(f"v_add_f32 v{V_L}, v{V_L}, v{b+6}")
                seq.append(f"v_add_f32 v{V_L+1}, v{V_L+1}, v{b+7}")
                seq.append(f"v_cvt_pk_bf16_f32 v{V_P+4*u+3}, v{b+6}, v{b+7}")
                return seq
            q0 = half_ops(0); q1 = half_ops(1)
            def rdV(i):
                u, t = divmod(i, 4)
                r = V_VF + 4 * i
                a(f"ds_read_b64_tr_b16 {vr(r,2)}, v{V_VA+t} offset:{vreg+u*4096}")
                a(f"ds_read_b64_tr_b16 {vr(r+2,2)}, v{V_VA+t} offset:{vreg+u*4096+2048}")
                c.issue(("V", i), 2)
            fill = q0 + q1
            def emit_fill(n):
                for _ in range(n):
                    if fill:
                        a(fill.pop(0))
            if do_qk:
                for s in range(8):
                    a(f"ds_read_b128 {vr(V_KF+4*s,4)}, v{V_KA+s} offset:{kreg}")
                    c.issue(("K", s))
                emit_fill(8)
                for s in range(8):
                    c.wait(("K", s))
                    mfma(a, Snxt, V_KF + 4 * s, V_Q + 4 * s, V_CM if s == 0 else Snxt)
                    if s < 7:
                        rdV(s)
                    emit_fill(3)
            else:
                for i in range(7):
                    rdV(i)
                emit_fill(len(q0))
            while len(fill) > len(q1):
                emit_fill(1)
            mx = []
            if do_qk:
                maxtree(Snxt, mx.append)
            a("s_nop 1")
            for i in range(8):
                u, t = divmod(i, 4)
                if i == 4:
                    emit_fill(len(fill))
                    a("s_nop 1")
                c.wait(("V", i))
                mfma(a, V_O + 16 * t, V_VF + 4 * i, V_P + 4 * u, V_O + 16 * t)
                if i == 0:
                    rdV(7)
                if i < 4:
                    emit_fill(4)
                else:
                    for _ in range(2):
                        if mx: a(mx.pop(0))
            if do_qk:
                assert not mx
                lr = a.label("K1_rare"); lb = a.label("K1_back")
                a(f"v_cmp_lt_f32 vcc, s54, v{T}")
                a(f"s_cbranch_vccnz {lr}")
                a(f"{lb}:")
                rare.append((lr, lb, Snxt))
        if last:
            a("s_cmp_eq_u32 s52, 3")
            a(f"s_cbranch_scc1 {lab_noqk}")
        step(True)
        if last:
            a(f"""
            s_add_u32 s52, s52, 1
            s_branch K1_aloop
            {lab_noqk}:
            """)
            step(False)
    stamp(a, opt, 7)
    a(f"""
    v_add_f32 v{V_L}, v{V_L}, v{V_L+1}
    v_lshlrev_b32 v141, 4, v{L}
    v_mov_b32 v{V_L+1}, v{V_L}
    s_mul_i32 s55, s{S_WAVE}, 8192
    s_add_u32 s56, s55, 4096
    v_permlane32_swap_b32 v{V_L}, v{V_L+1}
    v_add_f32 v{V_L}, v{V_L}, v{V_L+1}
    v_rcp_f32 v{V_L}, v{V_L}
    s_nop 8
    """)
    ost = opt.get("o_store", "")
    for f in range(8):
        t, u = divmod(f, 2)
        b = V_O + 16 * t + 8 * u
        for i in range(8):
            a(f"v_mul_f32 v{b+i}, v{b+i}, v{V_L}")
        d = V_KF + 4 * f
        for i in range(4):
            a(f"v_cvt_pk_bf16_f32 v{d+i}, v{b+2*i}, v{b+2*i+1}")
        so = "s55" if f < 4 else "s56"
        a(f"buffer_store_dwordx4 {vr(d,4)}, v141, {sr(S_O,4)}, {so} offen offset:{(f%4)*1024}{ost}")
    if opt.get("stamp"):
        stamp(a, opt, 8)
        a("s_waitcnt vmcnt(0)")
        stamp(a, opt, 9)
        stamp_init(a, opt, 16, S_WAVE)
        stamp_flush(a, opt, 10)
    a("s_endpgm")
    for lr, lb, S in rare:
        a(f"""
        {lr}:
        v_mov_b32 v{T+1}, v{T}
        s_nop 1
        v_permlane32_swap_b32 v{T}, v{T+1}
        v_max_f32 v{T}, v{T}, v{T+1}
        v_max_f32 v{T}, 0, v{T}           ; delta >= 0
        v_sub_f32 v{T+1}, 0, v{T}
        v_exp_f32 v{T+1}, v{T+1}          ; 2^-delta
        s_nop 12
        """)
        for i in range(16):
            a(f"v_sub_f32 v{S+i}, v{S+i}, v{T}")
        for i in range(16):
            a(f"v_sub_f32 v{V_CM+i}, v{V_CM+i}, v{T}")
        a(f"v_mul_f32 v{V_L}, v{V_L}, v{T+1}")
        a(f"v_mul_f32 v{V_L+1}, v{V_L+1}, v{T+1}")
        for i in range(64):
            a(f"v_mul_f32 v{V_O+i}, v{V_O+i}, v{T+1}")
        a(f"s_branch {lb}")

    GW, GX = 4, 8
    a(f"""
    K1_loader:
    v_lshrrev_b32 v1, 4, v{L}           ; l/16
    v_and_b32 v2, 15, v{L}
    v_lshlrev_b32 v3, 2, v1
    v_xor_b32 v3, v2, v3                ; c = p ^ 4*(l/16)
    v_lshlrev_b32 v3, 4, v3
    v_lshl_add_u32 v{GW}, v1, 13, v3    ; (l/16)*8192 + c*16
    v_add_u32 v{GW+1}, {1*(32768-1024)}, v{GW}
    v_add_u32 v{GW+2}, {2*(32768-1024)}, v{GW}
    v_add_u32 v{GW+3}, {3*(32768-1024)}, v{GW}
    v_lshrrev_b32 v2, 3, v{L}           ; l/8
    v_and_b32 v3, 7, v{L}
    v_xor_b32 v3, v3, v1                ; (l%8) ^ (l/16)
    v_lshlrev_b32 v3, 4, v3
    v_mul_u32_u24 v2, 1280, v2
    v_add_u32 v{GX}, v2, v3
    v_xor_b32 v3, 64, v3
    v_add_u32 v{GX+1}, v2, v3
    v_add_u32 v{GX+2}, {2*(10240-1024)}, v{GX}
    v_add_u32 v{GX+3}, {3*(10240-1024)}, v{GX+1}
    v_add_u32 v{GX+1}, {1*(10240-1024)}, v{GX+1}
    s_mov_b32 s50, {LW0}
    s_mov_b32 s51, {LX0}
    """)
    def issueX():
        for gi in range(3):
            a(f"s_add_u32 m0, s51, {gi*4096}")
            a(f"s_lshl_b32 s57, s45, 7")
            if gi:
                a(f"s_add_u32 s57, s57, {gi*40960}")
            for j in range(4):
                if not opt.get("q_noloadx"): a(f"buffer_load_dwordx4 v{GX+j}, {sr(S_X,4)}, s57 offen offset:{j*1024}{ntx} lds")
        a(f"""
        s_add_u32 s51, s51, {LXSZ}
        s_cmp_ge_u32 s51, {LX0+LXSZ*LXN}
        s_cselect_b32 s51, {LX0}, s51
        """)
    def issueW(half):
        for gi in range(2):
            a(f"s_add_u32 m0, s50, {gi*4096}")
            a(f"s_lshl_b32 s57, s45, 19")
            if half or gi:
                a(f"s_add_u32 s57, s57, {half*262144+gi*131072}")
            for j in range(4):
                if not opt.get("q_noloadw"): a(f"buffer_load_dwordx4 v{GW+j}, {sr(S_W,4)}, s57 offen offset:{j*1024}{ntw} lds")
        a(f"""
        s_add_u32 s50, s50, {LWSZ}
        s_cmp_ge_u32 s50, {LW0+LWSZ*LWN}
        s_cselect_b32 s50, {LW0}, s50
        """)
    def nextP():
        a(f"""
        s_add_u32 s45, s45, 1
        s_cmp_ge_u32 s45, 10
        s_cselect_b32 s45, 0, s45
        """)
    for i in range(2):
        issueX(); issueW(0); issueW(1); nextP()
    a(f"""
    s_mov_b32 s52, 0
    K1_lq:
    s_waitcnt vmcnt(36)
    s_barrier
    """)
    issueX(); issueW(0)
    a("s_waitcnt vmcnt(48)")
    a("s_barrier")
    issueW(1); nextP()
    a(f"""
    s_add_u32 s52, s52, 1
    s_cmp_lt_u32 s52, 8
    s_cbranch_scc1 K1_lq
    s_waitcnt vmcnt(36)
    s_barrier
    s_waitcnt vmcnt(28)
    s_barrier
    s_waitcnt vmcnt(8)
    s_barrier
    s_waitcnt vmcnt(0)
    s_barrier
    s_barrier                    ; QE
    """)
    WIN = opt.get("win", 18)
    def issueKV(srd, g, lds0, tile_sgpr, is_k):
        a(f"s_and_b32 s58, {tile_sgpr}, 3")
        a(f"s_lshl_b32 s58, s58, 13")
        a(f"s_lshl_b32 s57, {tile_sgpr}, 13")
        for gi in range(2):
            a(f"s_add_u32 m0, s58, {lds0+gi*4096}")
            if gi:
                a(f"s_add_u32 s57, s57, 4096")
            else:
                a("s_nop 0")
            for j in range(4):
                gg = g + j if is_k else g
                if j % 2 == 0:
                    a(f"s_waitcnt vmcnt({WIN-2})")
                if not opt.get("a_noload"): a(f"buffer_load_dwordx4 v{gg}, {sr(srd,4)}, s57 offen offset:{j*1024}{ntkv} lds")
    D = opt.get("depth", 2)
    nsw = opt.get("d3_until", 6)
    issued = 2
    q = []
    def issue_slot(j):
        if j <= 15:
            a(f"s_mov_b32 s59, {j}")
            issueKV(S_K, GK, LK0, "s59", True); q.extend([j] * 8)
        if j - 1 >= 3:
            a(f"s_mov_b32 s60, {j-1}")
            issueKV(S_V, GV, LV0, "s60", False); q.extend([j] * 8)
    for t in range(-1, 16):
        d = 3 if t < nsw else D
        tgt = min(16, t + d)
        if t == -1: tgt = 3
        while issued < tgt:
            issued += 1
            assert issued == 3 or issued - 4 <= t - 1
            issue_slot(issued)
        need = t + 1
        rem = len([x for x in q if x > need])
        if any(x <= need for x in q):
            a(f"s_waitcnt vmcnt({rem})")
            q = [x for x in q if x > need]
        a(f"s_barrier                  ; B_{t}")
    a("""
    K1_end:
    s_endpgm
    """)
    return dict(name="k1_kernel", body=a.text(), grid=512, block=256, lds=81920, vgpr=256, sgpr=96)

def k2(opt):
    a = Asm()
    S_OO, S_WO, S_PP = 20, 24, 28
    L = 250
    a(f"""
    s_cmp_ge_u32 s2, 512
    s_cbranch_scc1 K2_end
    s_and_b32 s3, s2, 7
    s_lshr_b32 s4, s3, 2           ; branch
    s_mul_i32 s5, s4, 40
    s_load_dwordx2 s[8:9], s[0:1], s5 offset:32     ; wo
    s_load_dwordx2 s[16:17], s[0:1], 96     ; ws
    s_and_b32 s3, s3, 3            ; octet
    s_lshr_b32 s6, s2, 3           ; idx
    s_and_b32 s7, s6, 7            ; b
    s_lshr_b32 s6, s6, 3           ; hh
    s_and_b32 s10, s6, 3           ; c
    s_lshr_b32 s6, s6, 2           ; qh
    s_lshl_b32 s3, s3, 1
    s_add_u32 s3, s3, s6
    v_lshrrev_b32 v1, 6, v0
    v_and_b32 v{L}, 63, v0
    v_readfirstlane_b32 s{S_WAVE}, v1
    s_lshl_b32 s41, s4, 8
    s_lshl_b32 s42, s7, 5
    s_add_u32 s41, s41, s42
    s_lshl_b32 s42, s3, 2
    s_add_u32 s41, s41, s42
    s_mul_i32 s41, s41, 24576
    s_add_u32 s41, s41, {WS_O}
    s_mul_i32 s42, s3, {512*1280}
    s_mul_i32 s43, s10, 320
    s_add_u32 s42, s42, s43
    s_sub_u32 s43, {512*1280}, s43
    s_lshl_b32 s44, s4, 3
    s_add_u32 s44, s44, s7
    s_lshl_b32 s44, s44, 2
    s_add_u32 s44, s44, s10
    s_lshl_b32 s44, s44, 3
    s_add_u32 s44, s44, s3
    s_mul_i32 s44, s44, 30720
    s_add_u32 s44, s44, {WS_P}
    s_waitcnt lgkmcnt(0)
    """)
    make_srd(a, S_OO, 16, "s41", 4 * 24576)
    make_srd(a, S_WO, 8, "s42", "s43")
    make_srd(a, S_PP, 16, "s44", 30720)
    a(f"""
    s_cmp_eq_u32 s{S_WAVE}, 3
    s_cbranch_scc1 K2_loader
    """)
    ACC, BF, AF = 0, 80, 208
    VA, VC, VL16 = 248, 249, 251
    a(f"v_lshlrev_b32 v{VL16}, 4, v{L}")
    a(f"s_lshl_b32 s47, s{S_WAVE}, 13")
    vm = Cnt(a, "vmcnt", 63)
    for j in range(4):
        for gi in range(2):
            a(f"s_add_u32 s48, s47, {j*24576+gi*4096}")
            for f in range(4):
                a(f"buffer_load_dwordx4 {vr(BF+4*(8*j+4*gi+f),4)}, v{VL16}, {sr(S_OO,4)}, s48 offen offset:{f*1024}")
                vm.issue(("B", 8 * j + 4 * gi + f))
    tr_lane_addr(a, VA, L, 1, 2, 8, 320, False)
    for i in range(80):
        a(f"v_mov_b32 v{ACC+i}, 0")
    for ch in range(16):
        a(f"v_add_u32 v{VC}, {(ch%8)*10240}, v{VA}")
        a("s_barrier")
        c = Cnt(a, "lgkmcnt", 15)
        order = [(ks, nt) for ks in range(2) for nt in range(5)]
        def rdA(ks, nt):
            r = AF + 4 * (5 * ks + nt)
            a(f"ds_read_b64_tr_b16 {vr(r,2)}, v{VC} offset:{ks*5120+nt*64}")
            a(f"ds_read_b64_tr_b16 {vr(r+2,2)}, v{VC} offset:{ks*5120+nt*64+1280}")
            c.issue((ks, nt), 2)
        for o in order[:7]:
            rdA(*o)
        pend = order[7:]
        for ks, nt in order:
            if nt == 0:
                vm.wait(("B", 2 * ch + ks))
            c.wait((ks, nt))
            mfma(a, ACC + 16 * nt, AF + 4 * (5 * ks + nt), BF + 4 * (2 * ch + ks), ACC + 16 * nt)
            if pend:
                rdA(*pend.pop(0))
    a("s_nop 12")
    a(f"s_mul_i32 s55, s{S_WAVE}, 10240")
    for f in range(10):
        b = ACC + 8 * f
        d = BF + 4 * f
        for i in range(4):
            a(f"v_cvt_pk_bf16_f32 v{d+i}, v{b+2*i}, v{b+2*i+1}")
        if f % 4 == 0 and f:
            a(f"s_add_u32 s55, s55, 4096")
        a(f"buffer_store_dwordx4 {vr(d,4)}, v{VL16}, {sr(S_PP,4)}, s55 offen offset:{(f%4)*1024}")
    a("s_endpgm")
    G = 4
    a("K2_loader:")
    a("s_movk_i32 s49, 3277")
    for i in range(5):
        a(f"""
        v_add_u32 v1, {64*i}, v{L}          ; n
        v_mul_u32_u24 v2, s49, v1
        v_lshrrev_b32 v2, 16, v2            ; row
        v_mul_u32_u24 v3, 20, v2
        v_sub_u32 v3, v1, v3                ; g
        v_mul_u32_u24 v2, 1280, v2
        v_lshl_add_u32 v{G+i}, v3, 4, v2
        """)
        if 0 < i < 4:
            a(f"v_subrev_u32 v{G+i}, {1024*i}, v{G+i}")
    def issue():
        for grp in range(2):
            a(f"s_add_u32 m0, s50, {grp*5120}")
            a(f"s_add_u32 s57, s51, {grp*16*1280}")
            for i in range(4):
                a(f"buffer_load_dwordx4 v{G+i}, {sr(S_WO,4)}, s57 offen offset:{i*1024} lds")
            a(f"s_add_u32 m0, s50, {grp*5120+4096}")
            a("s_nop 0")
            a(f"buffer_load_dwordx4 v{G+4}, {sr(S_WO,4)}, s57 offen lds")
        a(f"""
        s_add_u32 s50, s50, 10240
        s_cmp_ge_u32 s50, 81920
        s_cselect_b32 s50, 0, s50
        s_add_u32 s51, s51, {32*1280}
        """)
    a("s_mov_b32 s50, 0")
    a("s_mov_b32 s51, 0")
    a("s_mov_b32 s52, 0")
    a("K2_l0:")
    issue()
    a(f"""
    s_add_u32 s52, s52, 1
    s_cmp_lt_u32 s52, 6
    s_cbranch_scc1 K2_l0
    K2_l1:
    s_waitcnt vmcnt(50)
    s_barrier
    """)
    issue()
    a(f"""
    s_add_u32 s52, s52, 1
    s_cmp_lt_u32 s52, 16
    s_cbranch_scc1 K2_l1
    """)
    for r in (50, 40, 30, 20, 10, 0):
        a(f"s_waitcnt vmcnt({r})")
        a("s_barrier")
    a("""
    K2_end:
    s_endpgm
    """)
    return dict(name="k2_kernel", body=a.text(), grid=512, block=256, lds=81920, vgpr=256, sgpr=96)

def k3(opt):
    a = Asm()
    NP = opt.get("nparts", 8)
    a(f"""
    s_cmp_ge_u32 s2, 480
    s_cbranch_scc1 K3_end
    s_load_dwordx2 s[8:9], s[0:1], 80      ; out
    s_load_dwordx2 s[16:17], s[0:1], 96     ; ws
    v_lshrrev_b32 v1, 6, v0
    v_and_b32 v2, 63, v0
    v_readfirstlane_b32 s3, v1
    s_lshl_b32 s4, s2, 2
    s_add_u32 s4, s4, s3          ; W
    s_mul_i32 s5, s4, 2185
    s_lshr_b32 s5, s5, 16         ; rest = W/30  (W<1920)
    s_mul_i32 s6, s5, 30
    s_sub_u32 s6, s4, s6          ; W%30 = w*10+f
    s_mul_i32 s7, s6, 26
    s_lshr_b32 s7, s7, 8          ; w = /10
    s_mul_i32 s10, s7, 10
    s_sub_u32 s10, s6, s10        ; f
    s_mul_i32 s11, s5, {NP*30720}
    s_lshl_b32 s12, s6, 10
    s_add_u32 s11, s11, s12
    s_add_u32 s11, s11, {WS_P}
    s_and_b32 s12, s5, 3          ; c
    s_lshr_b32 s13, s5, 2
    s_and_b32 s14, s13, 7         ; b
    s_lshr_b32 s13, s13, 3        ; br
    s_mul_i32 s14, s14, 96
    s_lshl_b32 s15, s7, 5
    s_add_u32 s14, s14, s15
    s_mul_i32 s14, s14, 2560
    s_mul_i32 s13, s13, 1280
    s_add_u32 s14, s14, s13
    s_mul_i32 s12, s12, 320
    s_add_u32 s14, s14, s12
    s_lshl_b32 s12, s10, 5
    s_add_u32 s14, s14, s12       ; + f*32 bytes
    v_lshlrev_b32 v3, 4, v2       ; lane*16
    v_and_b32 v4, 31, v2
    v_mul_u32_u24 v4, 2560, v4
    v_lshrrev_b32 v5, 5, v2
    v_lshl_add_u32 v4, v5, 4, v4
    s_waitcnt lgkmcnt(0)
    """)
    make_srd(a, 20, 16, "s11", NP * 30720)
    make_srd(a, 24, 8, None, 8 * 96 * 2560)
    a("s_mov_b32 s30, 0")
    for g in range(NP):
        a(f"buffer_load_dwordx4 {vr(8+4*g,4)}, v3, s[20:23], s30 offen")
        if g < NP - 1:
            a("s_add_u32 s30, s30, 30720")
    A = 40
    for g in range(NP):
        a(f"s_waitcnt vmcnt({NP-1-g})")
        for i in range(4):
            r = 8 + 4 * g + i
            if g == 0:
                a(f"v_lshlrev_b32 v{A+2*i}, 16, v{r}")
                a(f"v_and_b32 v{A+2*i+1}, 0xffff0000, v{r}")
            else:
                a(f"v_lshlrev_b32 v6, 16, v{r}")
                a(f"v_and_b32 v7, 0xffff0000, v{r}")
                a(f"v_add_f32 v{A+2*i}, v{A+2*i}, v6")
                a(f"v_add_f32 v{A+2*i+1}, v{A+2*i+1}, v7")
    for i in range(4):
        a(f"v_cvt_pk_bf16_f32 v{48+i}, v{A+2*i}, v{A+2*i+1}")
    a("buffer_store_dwordx4 v[48:51], v4, s[24:27], s14 offen")
    a("""
    K3_end:
    s_endpgm
    """)
    return dict(name="k3_kernel", body=a.text(), grid=480, block=256, lds=0, vgpr=56, sgpr=40)

if __name__ == "__main__":
    import json
    out = sys.argv[1] if len(sys.argv) > 1 else "v1.s"
    opt = json.loads(sys.argv[2]) if len(sys.argv) > 2 else {}
    ks = []
    which = opt.get("kernels", "123")
    if "1" in which: ks.append(k1(opt))
    if "2" in which: ks.append(k2(opt))
    if "3" in which: ks.append(k3(opt))
    write_file(out, ks)
```

```python
import sys, math, struct, json
from asmlib import *
from gen import f2u, QSCALE, THRESH, Cnt, vr, sr, mfma, make_srd, tr_lane_addr

WS_O = 0
WS_P = 16 << 20
WS_F = 40 << 20
WS_T = 64 << 20

STAMPS = []
def stamp(a, opt, name):
    if not opt.get("stamp"): return
    if name not in STAMPS: STAMPS.append(name)
    a(f"""
    s_memrealtime s[92:93]
    s_memtime s[88:89]
    s_waitcnt lgkmcnt(0)
    v_writelane_b32 v255, s92, {STAMPS.index(name)}
    v_writelane_b32 v255, s88, {32+STAMPS.index(name)}
    """)
def stamp_flush(a, opt):
    if not opt.get("stamp"): return
    a(f"""
    s_lshl_b32 s88, s2, 3
    s_add_u32 s88, s88, s{S_WAVE}
    s_lshl_b32 s88, s88, 8
    s_add_u32 s88, s88, {WS_T}
    """)
    make_srd(a, 84, 16, "s88", 256)
    a(f"""
    v_lshlrev_b32 v254, 2, v{V_LANE}
    buffer_store_dword v255, v254, s[84:87], 0 offen
    """)

S_X, S_W, S_K, S_V, S_O = 20, 24, 28, 32, 36
S_WAVE, S_OCT, S_U, S_QT, S_J = 40, 60, 61, 62, 63
S_WO, S_OQ, S_PP = 64, 68, 72
S_DBG = 76
S_FL, S_OUT, S_PG, S_WW = 8, 12, 96, 84
S_QUAD, S_GRP = 82, 83
S_OOFF = 100
S_BR, S_B = 4, 7
PAGE, BLK = 16384, 8192
LW0, LWN = 5 * PAGE, 7
LX0, LXSZ = 5 * PAGE + 7 * BLK, 12288
def wslot(h): return (h + 1) % LWN
V_O, V_Q, V_SA, V_SB, V_CM, V_P, V_KF, V_VF = 0, 64, 96, 112, 128, 144, 152, 184
V_KA, V_VA, V_L, V_T = 216, 224, 228, 230
V_LANE = 250

def seq_tiles():
    s = [("K", 0)]
    for t in range(15):
        s += [("K", t + 1), ("V", t)]
    s.append(("V", 15))
    return s
def use_step(tile):
    k, j = tile
    return j - 1 if k == "K" else j
def plan_pages(opt):
    tiles = seq_tiles()
    page = {}; avail = {}
    first = [(0, ("q", -1)), (1, ("q", -1)), (2, ("q", -1)), (3, ("q", -1)), (4, ("q", -1)),
             (8, ("q", 18)), (5, ("q", 18)), (6, ("q", 19)), (7, ("qe",)), (9, ("qe",))]
    free = list(first)
    shrink = opt.get("shrink", 7)
    retired = {}
    for tl in tiles:
        p, ev = free.pop(0)
        page[tl] = p; avail[tl] = ev
        rel = ("b", use_step(tl) + 1)
        if p >= 6 and use_step(tl) >= shrink:
            retired[p] = rel
        else:
            free.append((p, rel))
            free.sort(key=lambda x: ev_order(x[1]))
    for p, ev in free:
        retired[p] = ev
    return page, avail, retired
def ev_order(ev):
    if ev[0] == "q": return ev[1]
    if ev[0] == "qe": return 20
    return 21 + ev[1]

def wo_plan(retired):
    out = []
    for s in range(8):
        lo, hi = s * 20480, (s + 1) * 20480 - 1
        ev = max((retired[p] for p in range(lo // PAGE, hi // PAGE + 1)), key=ev_order)
        out.append((s, ev))
    out.sort(key=lambda x: ev_order(x[1]))
    return out

def kernel(opt):
    a = Asm()
    page, avail, retired = plan_pages(opt)
    wop = wo_plan(retired)
    SLOT_ORDER = [s for s, _ in wop]
    def wo_slot(c): return SLOT_ORDER[c % 8] * 20480
    if opt.get("verbose"):
        print({f"{k}{j}": (page[(k, j)], avail[(k, j)]) for k, j in seq_tiles()}); print(wop)
    ntkv = " nt" if opt.get("nt_kv", True) else ""
    L = V_LANE
    a(f"""
    s_cmp_ge_u32 s2, 256
    s_cbranch_scc1 K_end
    s_and_b32 s3, s2, 7
    s_lshr_b32 s{S_BR}, s3, 2      ; branch
    s_mul_i32 s5, s{S_BR}, 40
    s_load_dwordx8 s[8:15], s[0:1], s5      ; x, k, v, wq
    s_load_dwordx2 s[18:19], s[0:1], s5 offset:32   ; wo
    s_load_dwordx2 s[16:17], s[0:1], 96     ; ws
    s_load_dwordx2 s[76:77], s[0:1], 88     ; debug
    s_load_dwordx2 s[80:81], s[0:1], 80     ; out
    v_lshrrev_b32 v1, 6, v0
    v_and_b32 v{L}, 63, v0
    v_readfirstlane_b32 s{S_WAVE}, v1
    s_and_b32 s{S_OCT}, s3, 3
    s_lshr_b32 s6, s2, 3           ; idx 0..31
    s_and_b32 s{S_B}, s6, 7        ; b
    s_lshr_b32 s{S_J}, s6, 3       ; j 0..3
    s_lshr_b32 s{S_U}, s{S_WAVE}, 2
    s_and_b32 s{S_QT}, s{S_WAVE}, 3
    s_lshl_b32 s3, s{S_OCT}, 3
    s_lshl_b32 s6, s{S_J}, 1
    s_add_u32 s6, s6, s3
    s_add_u32 s6, s6, s{S_U}       ; h = 8*oct + 2*j + u
    s_lshl_b32 s43, s{S_B}, 5
    s_add_u32 s43, s43, s6         ; b*32+h
    s_lshl_b32 s47, s{S_U}, 13     ; u*8192
    s_lshl_b32 s48, s{S_U}, 12     ; u*4096
    s_lshl_b32 s44, s{S_BR}, 3
    s_add_u32 s44, s44, s{S_B}
    s_lshl_b32 s44, s44, 2         ; (br*8+b)*4
    s_add_u32 s{S_QUAD}, s44, s{S_OCT}
    s_add_u32 s{S_GRP}, s44, s{S_J}
    s_cmp_eq_u32 s{S_QT}, 3
    s_cbranch_scc1 K_loader
    """)
    stamp(a, opt, "start")
    WB, XB = 230, 238
    tr_lane_addr(a, WB, L, 1, 2, 8, 256, True)
    a(f"s_add_u32 s49, s48, {LW0}")
    a(f"v_add_u32 v{WB}, s49, v{WB}")
    for t in range(1, 4):
        a(f"v_xor_b32 v{WB+t}, {64*t}, v{WB}")
    a(f"""
    v_and_b32 v1, 31, v{L}              ; j
    v_lshrrev_b32 v2, 5, v{L}           ; h
    v_bfe_u32 v3, v1, 1, 3              ; (j/2)%8
    v_xor_b32 v2, v2, v3
    v_lshlrev_b32 v2, 4, v2
    v_lshl_add_u32 v2, v1, 7, v2
    s_lshl_b32 s49, s{S_QT}, 12         ; qt*32*128
    s_add_u32 s49, s49, {LX0}
    v_add_u32 v{XB}, s49, v2
    v_xor_b32 v{XB+1}, 32, v{XB}
    v_xor_b32 v{XB+2}, 64, v{XB}
    v_xor_b32 v{XB+3}, 96, v{XB}
    v_and_b32 v1, 31, v{L}              ; i
    v_lshrrev_b32 v2, 5, v{L}           ; h
    v_and_b32 v3, 15, v1
    v_xor_b32 v2, v2, v3
    v_lshlrev_b32 v2, 4, v2
    v_lshl_add_u32 v{V_KA}, v1, 8, v2
    v_add_u32 v{V_KA}, s47, v{V_KA}
    """)
    for s in range(1, 8):
        a(f"v_xor_b32 v{V_KA+s}, {32*s}, v{V_KA}")
    tr_lane_addr(a, V_VA, L, 1, 2, 4, 256, True)
    a(f"v_add_u32 v{V_VA}, s47, v{V_VA}")
    for t in range(1, 4):
        a(f"v_xor_b32 v{V_VA+t}, {64*t}, v{V_VA}")
    QA = V_KF
    for i in range(64):
        a(f"v_mov_b32 v{V_O+i}, 0")
    a(f"v_mov_b32 v{V_L}, 0")
    a(f"v_mov_b32 v{V_L+1}, 0")
    a(f"""
    s_waitcnt lgkmcnt(0)
    s_lshl_b32 s44, s{S_BR}, 8
    s_add_u32 s44, s44, s43
    s_mul_i32 s44, s44, 24576
    s_mul_i32 s41, s{S_QUAD}, {8*24576}
    s_lshl_b32 s42, s{S_GRP}, 2
    s_mul_i32 s45, s42, 30720
    s_add_u32 s45, s45, {WS_P}
    s_mul_i32 s46, s{S_OCT}, 30720
    s_add_u32 s46, s46, s45
    """)
    make_srd(a, S_O, 16, "s44", 24576)
    make_srd(a, S_OQ, 16, "s41", 8 * 24576)
    make_srd(a, S_PG, 16, "s45", 4 * 30720)
    make_srd(a, S_PP, 16, "s46", 30720)
    make_srd(a, S_OUT, 80, None, 8 * 96 * 2560)
    a(f"""
    s_mul_i32 s41, s{S_B}, 96
    s_lshl_b32 s42, s{S_QT}, 5
    s_add_u32 s41, s41, s42
    s_lshl_b32 s42, s{S_OCT}, 3
    s_add_u32 s41, s41, s42
    s_mul_i32 s41, s41, 2560
    s_mul_i32 s42, s{S_BR}, 1280
    s_add_u32 s41, s41, s42
    s_mul_i32 s42, s{S_J}, 320
    s_add_u32 s41, s41, s42
    s_mul_i32 s42, s{S_U}, 160
    s_add_u32 s{S_OOFF}, s41, s42
    s_mov_b32 s53, {hex(f2u(QSCALE))}
    s_mov_b32 s54, {hex(f2u(THRESH))}
    """)
    a(f"""
    s_add_u32 s95, s{S_OCT}, s{S_J}
    s_add_u32 s95, s95, s{S_WAVE}
    s_lshr_b32 s78, s{S_QUAD}, 2
    s_lshl_b32 s42, s78, 11
    s_add_u32 s42, s42, {WS_F}
    """)
    make_srd(a, S_FL, 16, "s42", 32768 + 2048)
    a(f"""
    v_and_b32 v246, 15, v{L}
    v_lshlrev_b32 v246, 7, v246
    v_bfe_u32 v247, v{L}, 4, 1
    v_lshlrev_b32 v247, 15, v247
    v_add_u32 v246, v246, v247
    s_lshl_b32 s44, s78, 4
    v_mov_b32 v248, s44
    s_cmp_eq_u32 s95, 0
    s_cbranch_scc0 K_nz
    buffer_load_dword v247, v246, {sr(S_FL,4)}, 0 offen sc1
    K_nz:
    """)
    AFs, BFs = [96, 64], [128, 144]
    for st in range(21):
        if st == 6:
            a(f"""
            s_cmp_eq_u32 s95, 0
            s_cbranch_scc0 K_na
            s_waitcnt vmcnt(0)
            s_mov_b32 s44, 0
            K_pick:
            s_add_u32 s44, s44, 1
            v_cmp_eq_u32 vcc, s44, v247
            s_cbranch_vccnz K_pick
            v_mov_b32 v249, s44
            s_mov_b64 exec, 1
            global_store_dword v248, v249, s[{S_DBG}:{S_DBG+1}] sc1
            s_mov_b64 exec, -1
            K_na:
            """)
        if st < 20:
            a("s_barrier")
            if st in (0, 4, 8, 12, 16): stamp(a, opt, f"q{st}")
        reads = []
        if st < 20 and not opt.get("q_noread"):
            AF, BF = AFs[st % 2], BFs[st % 2]
            xo_ = ((st // 2) % 2) * LXSZ
            for ks in range(2):
                wo_ = wslot(2 * st + ks) * BLK
                reads.append(f"ds_read_b128 {vr(BF+4*ks,4)}, v{XB+2*(st%2)+ks} offset:{xo_}")
                for t in range(4):
                    r = AF + 16 * ks + 4 * t
                    reads.append(f"ds_read_b64_tr_b16 {vr(r,2)}, v{WB+t} offset:{wo_}")
                    reads.append(f"ds_read_b64_tr_b16 {vr(r+2,2)}, v{WB+t} offset:{wo_+1024}")
        nrd = 0
        def rd(n):
            nonlocal nrd
            for _ in range(n):
                if reads:
                    a(reads.pop(0)); nrd += 1
                    if nrd == 14:
                        a("s_waitcnt lgkmcnt(10)")
        if 0 < st < 20 and opt.get("q_nomfma"):
            rd(99)
            a("s_sleep 7")
        elif 0 < st < 20:
            AF, BF = AFs[(st - 1) % 2], BFs[(st - 1) % 2]
            for ks in range(2):
                for t in range(4):
                    mfma(a, QA + 16 * t, AF + 16 * ks + 4 * t, BF + 4 * ks, None if (st == 1 and ks == 0) else QA + 16 * t)
                    rd(3)
        rd(99)
        if st < 20:
            a("s_waitcnt lgkmcnt(0)")
        if st == 19:
            a("s_barrier")
    stamp(a, opt, "Qend")
    AF, BF = AFs[1], BFs[1]
    KP = 96
    c = Cnt(a, "lgkmcnt", 15)
    kbase = 0; vbase = 0
    for s in range(8):
        a(f"ds_read_b128 {vr(KP+4*s,4)}, v{V_KA+s} offset:{page[('K',0)]*PAGE}")
        c.issue(("K", s))
    for t in range(4):
        for ks in range(2):
            mfma(a, QA + 16 * t, AF + 16 * ks + 4 * t, BF + 4 * ks, QA + 16 * t)
    a("s_nop 5")
    SP = V_CM
    for t in range(4):
        for i in range(8):
            r = QA + 16 * t + 2 * i
            a(f"v_mul_f32 v{r}, s53, v{r}")
            a(f"v_mul_f32 v{r+1}, s53, v{r+1}")
            a(f"v_cvt_pk_bf16_f32 v{V_Q+8*t+i}, v{r}, v{r+1}")
            if t > 0 and i in (1, 5):
                s = 2 * (t - 1) + (i // 4)
                c.wait(("K", s))
                mfma(a, SP, KP + 4 * s, V_Q + 4 * s, None if s == 0 else SP)
    a("s_nop 1")
    for s in (6, 7):
        c.wait(("K", s))
        mfma(a, SP, KP + 4 * s, V_Q + 4 * s, SP)
    a("s_barrier")
    T = V_T
    def maxtree(S, emit):
        emit(f"v_max3_f32 v{T}, v{S}, v{S+1}, v{S+2}")
        emit(f"v_max3_f32 v{T+1}, v{S+3}, v{S+4}, v{S+5}")
        emit(f"v_max3_f32 v{T+2}, v{S+6}, v{S+7}, v{S+8}")
        emit(f"v_max3_f32 v{T+3}, v{S+9}, v{S+10}, v{S+11}")
        emit(f"v_max3_f32 v{T+4}, v{S+12}, v{S+13}, v{S+14}")
        emit(f"v_max3_f32 v{T}, v{T}, v{T+1}, v{S+15}")
        emit(f"v_max3_f32 v{T+2}, v{T+2}, v{T+3}, v{T+4}")
        emit(f"v_max_f32 v{T}, v{T}, v{T+2}")
    a("s_nop 11")
    maxtree(SP, a)
    a(f"""
    v_mov_b32 v{T+1}, v{T}
    s_nop 1
    v_permlane32_swap_b32 v{T}, v{T+1}
    v_max_f32 v{T}, v{T}, v{T+1}
    """)
    for i in range(16):
        a(f"v_sub_f32 v{V_SA+i}, v{SP+i}, v{T}")
        a(f"v_sub_f32 v{V_CM+i}, 0, v{T}")
    rare = []
    def rebase(cur, pg, regs, n):
        if cur <= pg <= cur + 3: return cur
        new = min(pg, 6) if pg > cur else max(0, pg - 0)
        d = (new - cur) * PAGE
        for i in range(n):
            if d > 0: a(f"v_add_u32 v{regs+i}, {d}, v{regs+i}")
            else: a(f"v_subrev_u32 v{regs+i}, {-d}, v{regs+i}")
        return new
    for t_ in range(16):
        Scur, Snxt = (V_SA, V_SB) if t_ % 2 == 0 else (V_SB, V_SA)
        do_qk = t_ < 15
        if do_qk:
            kbase = rebase(kbase, page[("K", t_ + 1)], V_KA, 8)
            kreg = (page[("K", t_ + 1)] - kbase) * PAGE
        vbase = rebase(vbase, page[("V", t_)], V_VA, 4)
        vreg = (page[("V", t_)] - vbase) * PAGE
        if t_ > 0:
            a(f"s_barrier              ; B_{t_}")
        if t_ % opt.get("astamp", 4) == 0 or t_ == 15: stamp(a, opt, f"a{t_}")
        if opt.get("a_nocompute"): continue
        c = Cnt(a, "lgkmcnt", 15)
        def half_ops(u):
            b = Scur + 8 * u
            ops = [f"v_exp_f32 v{b+i}, v{b+i}" for i in range(8)]
            seq = [ops[0], ops[1]]
            for i in range(2, 8):
                seq.append(ops[i])
                seq.append(f"v_add_f32 v{V_L+(i%2)}, v{V_L+(i%2)}, v{b+i-2}")
                if i % 2 == 1:
                    seq.append(f"v_cvt_pk_bf16_f32 v{V_P+4*u+(i-3)//2}, v{b+i-3}, v{b+i-2}")
            seq.append(f"v_add_f32 v{V_L}, v{V_L}, v{b+6}")
            seq.append(f"v_add_f32 v{V_L+1}, v{V_L+1}, v{b+7}")
            seq.append(f"v_cvt_pk_bf16_f32 v{V_P+4*u+3}, v{b+6}, v{b+7}")
            return seq
        q0 = half_ops(0); q1 = half_ops(1)
        def rdV(i):
            u, t = divmod(i, 4)
            r = V_VF + 4 * i
            a(f"ds_read_b64_tr_b16 {vr(r,2)}, v{V_VA+t} offset:{vreg+u*4096}")
            a(f"ds_read_b64_tr_b16 {vr(r+2,2)}, v{V_VA+t} offset:{vreg+u*4096+2048}")
            c.issue(("V", i), 2)
        fill = q0 + q1
        def emit_fill(n):
            for _ in range(n):
                if fill:
                    a(fill.pop(0))
        if do_qk:
            for s in range(8):
                a(f"ds_read_b128 {vr(V_KF+4*s,4)}, v{V_KA+s} offset:{kreg}")
                c.issue(("K", s))
            emit_fill(8)
            for s in range(8):
                c.wait(("K", s))
                mfma(a, Snxt, V_KF + 4 * s, V_Q + 4 * s, V_CM if s == 0 else Snxt)
                if s < 7:
                    rdV(s)
                emit_fill(3)
        else:
            for i in range(7):
                rdV(i)
            emit_fill(len(q0))
        while len(fill) > len(q1):
            emit_fill(1)
        mx = []
        if do_qk:
            maxtree(Snxt, mx.append)
        a("s_nop 1")
        for i in range(8):
            u, t = divmod(i, 4)
            if i == 4:
                emit_fill(len(fill))
                a("s_nop 1")
            c.wait(("V", i))
            mfma(a, V_O + 16 * t, V_VF + 4 * i, V_P + 4 * u, V_O + 16 * t)
            if i == 0:
                rdV(7)
            if i < 4:
                emit_fill(4)
            else:
                for _ in range(2):
                    if mx: a(mx.pop(0))
        if do_qk:
            assert not mx
            lr = a.label("K_rare"); lb = a.label("K_back")
            a(f"v_cmp_lt_f32 vcc, s54, v{T}")
            a(f"s_cbranch_vccnz {lr}")
            a(f"{lb}:")
            rare.append((lr, lb, Snxt))
    a("s_barrier")
    stamp(a, opt, "attend")
    if opt.get("notail"):
        stamp_flush(a, opt)
        a("s_endpgm")
    VL16 = 243
    a(f"""
    v_add_f32 v{V_L}, v{V_L}, v{V_L+1}
    v_lshlrev_b32 v{VL16}, 4, v{L}
    v_mov_b32 v{V_L+1}, v{V_L}
    s_lshl_b32 s55, s{S_QT}, 13
    s_add_u32 s56, s55, 4096
    v_permlane32_swap_b32 v{V_L}, v{V_L+1}
    v_add_f32 v{V_L}, v{V_L}, v{V_L+1}
    v_rcp_f32 v{V_L}, v{V_L}
    s_nop 3
    """)
    for f in range(8):
        t, u = divmod(f, 2)
        b = V_O + 16 * t + 8 * u
        for i in range(8):
            a(f"v_mul_f32 v{b+i}, v{b+i}, v{V_L}")
        d = V_KF + 4 * f
        for i in range(4):
            a(f"v_cvt_pk_bf16_f32 v{d+i}, v{b+2*i}, v{b+2*i+1}")
        so = "s55" if f < 4 else "s56"
        a(f"buffer_store_dwordx4 {vr(d,4)}, v{VL16}, {sr(S_O,4)}, {so} offen offset:{(f%4)*1024}{opt.get('ost', ' sc1')}")
    stamp(a, opt, "stissue")
    ACC, AFR, NF = 0, 80, 8
    OWN = V_KF
    RF = [112 + 4 * i for i in range(10)] + [184 + 4 * i for i in range(14)]
    VA0 = 240
    def bfrag(ks): return OWN + 4 * ks if ks < 8 else RF[ks - 8]
    tr_lane_addr(a, VA0, L, 244, 245, 8, 320, False)
    a(f"""
    s_mul_i32 s49, s{S_U}, 10240
    v_add_u32 v{VA0}, s49, v{VA0}
    v_add_u32 v{VA0+1}, 61440, v{VA0}
    v_add_u32 v{VA0+2}, 122880, v{VA0}
    """)
    c = Cnt(a, "lgkmcnt", 15)
    vm = Cnt(a, "vmcnt", 63)
    AHEAD = 7
    SIG_AT = opt.get("sig_at", 6); RB_AT = opt.get("rb_at", 24)
    def rdA(i):
        ch, r = divmod(i, 10)
        ks, nt = divmod(r, 5)
        if r == 0 and ch >= 5:
            a(f"s_barrier           ; OB_{ch}")
            if ch in (8, 12): stamp(a, opt, f"ob{ch}")
        off = wo_slot(ch) + ks * 5120 + nt * 64
        va = VA0 + off // 61440
        off %= 61440
        d = AFR + 4 * (i % NF)
        a(f"ds_read_b64_tr_b16 {vr(d,2)}, v{va} offset:{off}")
        a(f"ds_read_b64_tr_b16 {vr(d+2,2)}, v{va} offset:{off+1280}")
        c.issue(i, 2)
    nrl = [0]
    for i in range(AHEAD):
        rdA(i)
    for i in range(160):
        ch, r = divmod(i, 10)
        ks, nt = divmod(r, 5)
        kk = 2 * ch + ks
        if i == SIG_AT:
            a("s_waitcnt vmcnt(0)")
            a("s_barrier")
            stamp(a, opt, "sig")
        if i == RB_AT:
            stamp(a, opt, "rb0")
            a("s_barrier")
            stamp(a, opt, "rb1")
            for m in range(1, 4):
                a(f"""
                s_add_u32 s49, s{S_J}, {m}
                s_and_b32 s49, s49, 3
                s_lshl_b32 s49, s49, 1
                s_add_u32 s49, s49, s{S_U}
                s_mul_i32 s49, s49, 24576
                s_add_u32 s{57+2*(m-1) if m < 3 else 45}, s49, s55
                s_add_u32 s{58+2*(m-1) if m < 2 else (46 if m == 3 else 44)}, s49, s56
                """)
        if i >= RB_AT:
            first = opt.get("rload_first", 8); gap = opt.get("rload_gap", 4)
            di = i - RB_AT
            want = min(24, min(first, 2 * (di + 1)) + max(0, (di - first // 2) // gap + 1 if di >= first // 2 else 0))
            while nrl[0] < want:
                q = nrl[0]; nrl[0] += 1
                m, f = divmod(q, 8)
                so = [["s57", "s58"], ["s59", "s44"], ["s45", "s46"]][m][f // 4]
                a(f"buffer_load_dwordx4 {vr(bfrag(8+q),4)}, v{VL16}, {sr(S_OQ,4)}, {so} offen offset:{(f%4)*1024} sc1")
                vm.issue(("R", 8 + q))
        if nt == 0 and kk >= 8:
            assert nrl[0] > kk - 8
            vm.wait(("R", kk))
            if kk == 8: stamp(a, opt, "r8")
        c.wait(i)
        mfma(a, ACC + 16 * nt, AFR + 4 * (i % NF), bfrag(kk), None if kk == 0 else ACC + 16 * nt)
        if i + AHEAD < 160:
            rdA(i + AHEAD)
    stamp(a, opt, "opend")
    XA = opt.get("xarea", None)
    xs = [SLOT_ORDER[c % 8] * 20480 for c in (8, 9, 10)]
    a(f"""
    s_mov_b32 s49, {xs[0]}
    s_cmp_eq_u32 s{S_QT}, 1
    s_cselect_b32 s49, {xs[1]}, s49
    s_cmp_eq_u32 s{S_QT}, 2
    s_cselect_b32 s49, {xs[2]}, s49
    s_mul_i32 s57, s{S_U}, 10240
    s_add_u32 s58, s49, s57
    s_sub_u32 s57, 10240, s57
    s_add_u32 s59, s49, s57
    v_add_u32 v244, s58, v{VL16}
    v_add_u32 v245, s59, v{VL16}
    s_mul_i32 s49, s{S_QT}, 10240
    s_mul_i32 s57, s{S_U}, 5120
    s_add_u32 s49, s49, s57
    s_add_u32 s57, s49, 4096
    s_cmp_eq_u32 s{S_U}, 0
    s_cbranch_scc0 K_x1
    """)
    for u in range(2):
        send = ACC + 40 * (1 - u); keep = ACC + 40 * u
        for i in range(10):
            a(f"ds_write_b128 v244, {vr(send+4*i,4)} offset:{i*1024}")
        a("s_waitcnt lgkmcnt(0)")
        a("s_barrier           ; X1")
        for i in range(10):
            a(f"ds_read_b128 {vr(112+4*i,4)}, v245 offset:{i*1024}")
        for f in range(5):
            a(f"s_waitcnt lgkmcnt({8-2*f})")
            for i in range(8):
                a(f"v_add_f32 v{keep+8*f+i}, v{keep+8*f+i}, v{112+8*f+i}")
            d = 184 + 4 * f
            for i in range(4):
                a(f"v_cvt_pk_bf16_f32 v{d+i}, v{keep+8*f+2*i}, v{keep+8*f+2*i+1}")
            so = "s49" if f < 4 else "s57"
            a(f"buffer_store_dwordx4 {vr(d,4)}, v{VL16}, {sr(S_PP,4)}, {so} offen offset:{(f%4)*1024} sc1")
        if u == 0:
            a("s_branch K_x2")
            a("K_x1:")
    a("K_x2:")
    stamp(a, opt, "pst")
    a(f"""
    ; item n = lane (+64): g = n/8, r = n%8 ; partial addr = (g/2)*1024 + ((g%2)*32 + 8*oct + r)*16 ; out addr = r*2560 + g*16
    v_lshrrev_b32 v1, 3, v{L}          ; g
    v_and_b32 v2, 7, v{L}              ; r
    v_lshrrev_b32 v3, 1, v1
    v_lshlrev_b32 v3, 10, v3
    v_and_b32 v4, 1, v1
    v_lshlrev_b32 v4, 9, v4
    v_add_u32 v3, v3, v4
    v_lshl_add_u32 v3, v2, 4, v3
    s_lshl_b32 s59, s{S_OCT}, 7
    v_add_u32 v3, s59, v3
    v_add_u32 v4, 4096, v3             ; round 1
    v_mul_u32_u24 v5, 2560, v2
    v_lshl_add_u32 v5, v1, 4, v5
    """)
    for g in range(4):
        a(f"s_add_u32 s{52+g}, s49, {g*30720}")
    a("s_waitcnt vmcnt(0)")
    a("s_barrier")
    stamp(a, opt, "f0")
    a("s_barrier")
    stamp(a, opt, "f1")
    for g in range(4):
        a(f"buffer_load_dwordx4 {vr(8+4*g,4)}, v3, {sr(S_PG,4)}, s{52+g} offen sc1")
    a("s_mov_b64 exec, 0xffff")
    for g in range(4):
        a(f"buffer_load_dwordx4 {vr(24+4*g,4)}, v4, {sr(S_PG,4)}, s{52+g} offen sc1")
    a("s_mov_b64 exec, -1")
    for rnd in range(2):
        A = 40 + 8 * rnd
        for g in range(4):
            a(f"s_waitcnt vmcnt({7-4*rnd-g+rnd})")
            for i in range(4):
                r = 8 + 16 * rnd + 4 * g + i
                if g == 0:
                    a(f"v_lshlrev_b32 v{A+2*i}, 16, v{r}")
                    a(f"v_and_b32 v{A+2*i+1}, 0xffff0000, v{r}")
                else:
                    a(f"v_lshlrev_b32 v6, 16, v{r}")
                    a(f"v_and_b32 v7, 0xffff0000, v{r}")
                    a(f"v_add_f32 v{A+2*i}, v{A+2*i}, v6")
                    a(f"v_add_f32 v{A+2*i+1}, v{A+2*i+1}, v7")
        for i in range(4):
            a(f"v_cvt_pk_bf16_f32 v{56+4*rnd+i}, v{A+2*i}, v{A+2*i+1}")
        if rnd == 1:
            a("s_mov_b64 exec, 0xffff")
        a(f"buffer_store_dwordx4 {vr(56+4*rnd,4)}, v5, {sr(S_OUT,4)}, s{S_OOFF} offen offset:{128*rnd}")
    a("s_mov_b64 exec, -1")
    if opt.get("stamp"):
        a("s_waitcnt vmcnt(0)")
        stamp(a, opt, "done")
        stamp_flush(a, opt)
    a("s_endpgm")
    for lr, lb, S in rare:
        a(f"""
        {lr}:
        v_mov_b32 v{T+1}, v{T}
        s_nop 1
        v_permlane32_swap_b32 v{T}, v{T+1}
        v_max_f32 v{T}, v{T}, v{T+1}
        v_max_f32 v{T}, 0, v{T}           ; delta >= 0
        v_sub_f32 v{T+1}, 0, v{T}
        v_exp_f32 v{T+1}, v{T+1}          ; 2^-delta
        s_nop 12
        """)
        for i in range(16):
            a(f"v_sub_f32 v{S+i}, v{S+i}, v{T}")
        for i in range(16):
            a(f"v_sub_f32 v{V_CM+i}, v{V_CM+i}, v{T}")
        a(f"v_mul_f32 v{V_L}, v{V_L}, v{T+1}")
        a(f"v_mul_f32 v{V_L+1}, v{V_L+1}, v{T+1}")
        for i in range(64):
            a(f"v_mul_f32 v{V_O+i}, v{V_O+i}, v{T+1}")
        a(f"s_branch {lb}")
    att_text = a.text()

    a = Asm(); a.nlabel = 1000
    GW, GX, GK, GV, GO = 4, 8, 12, 16, 20
    rotG = opt.get("rot", "g5")
    a("K_loader:")
    if rotG == "g10":
        a(f"""
        s_mul_i32 s45, s{S_J}, 3
        s_add_u32 s45, s45, s{S_B}         ; rotation = (b + 3j) % 10
        s_cmp_ge_u32 s45, 10
        s_cselect_b32 s46, 10, 0
        s_sub_u32 s45, s45, s46
        """)
    elif rotG == "g4":
        a(f"""
        s_add_u32 s45, s{S_J}, s{S_B}
        s_and_b32 s45, s45, 3
        s_mul_i32 s45, s45, 5
        s_lshr_b32 s45, s45, 1             ; 0,2,5,7
        """)
    elif rotG == "g5":
        a(f"""
        s_add_u32 s45, s{S_J}, s{S_B}      ; 0..10
        s_cmp_ge_u32 s45, 5
        s_cselect_b32 s46, 5, 0
        s_sub_u32 s45, s45, s46
        s_cmp_ge_u32 s45, 5
        s_cselect_b32 s46, 5, 0
        s_sub_u32 s45, s45, s46
        s_lshl_b32 s45, s45, 1
        """)
    a(f"""
    v_lshrrev_b32 v1, 4, v{L}           ; l/16
    v_and_b32 v2, 15, v{L}
    ; X: instr i = 2m+u : rows 8i + l/8 ; c = (l%8) ^ (l/16) ^ 4u
    v_lshrrev_b32 v17, 3, v{L}          ; l/8
    v_and_b32 v3, 7, v{L}
    v_xor_b32 v3, v3, v1
    s_lshl_b32 s49, s{S_U}, 2
    v_xor_b32 v3, s49, v3
    v_lshlrev_b32 v3, 4, v3
    v_mul_u32_u24 v17, 1280, v17
    v_add_u32 v{GX}, v17, v3
    s_mul_i32 s49, s{S_U}, 10240
    v_add_u32 v{GX}, s49, v{GX}
    v_add_u32 v{GX+1}, {20480-2048}, v{GX}
    v_lshlrev_b32 v3, 2, v1
    v_xor_b32 v3, v2, v3                ; c = p ^ 4*(l/16)
    v_lshlrev_b32 v3, 4, v3
    v_lshl_add_u32 v{GV}, v1, 8, v3
    v_lshl_add_u32 v{GW}, v1, 13, v3    ; (l/16)*8192 + c*16
    v_add_u32 v{GW+1}, {1*(32768-1024)}, v{GW}
    v_add_u32 v{GW+2}, {2*(32768-1024)}, v{GW}
    v_add_u32 v{GW+3}, {3*(32768-1024)}, v{GW}
    s_lshl_b32 s50, s{S_U}, 10
    s_mov_b32 s51, s45
    s_lshl_b32 s52, s45, 2
    s_mul_i32 s41, s{S_B}, 122880       ; x offset
    s_lshl_b32 s42, s6, 8
    s_sub_u32 s46, {640*8192}, s42
    s_lshl_b32 s43, s43, 17
    s_waitcnt lgkmcnt(0)
    """)
    make_srd(a, S_X, 8, "s41", 122880)
    make_srd(a, S_W, 14, "s42", "s46")
    vm = Cnt(a, "vmcnt", 63)
    def issueX(i):
        for g in range(3):
            a(f"s_add_u32 m0, s50, {LX0+(i%2)*LXSZ+g*4096}")
            a(f"s_lshl_b32 s57, s51, 7")
            if g:
                a(f"s_add_u32 s57, s57, {g*40960}")
            for m in range(2):
                a(f"buffer_load_dwordx4 v{GX+m}, {sr(S_X,4)}, s57 offen offset:{m*2048} lds")
                vm.issue(("X", i))
        a(f"""
        s_add_u32 s51, s51, 1
        s_cmp_ge_u32 s51, 10
        s_cselect_b32 s51, 0, s51
        """)
    def issueW(h):
        a(f"s_add_u32 m0, s48, {LW0+wslot(h)*BLK}")
        a(f"s_lshl_b32 s57, s52, 17")
        for j in range(4):
            a(f"buffer_load_dwordx4 v{GW+j}, {sr(S_W,4)}, s57 offen offset:{j*1024} lds")
            vm.issue(("W", h))
        a(f"""
        s_add_u32 s52, s52, 1
        s_cmp_ge_u32 s52, 40
        s_cselect_b32 s52, 0, s52
        """)
    def window(w):
        if w and len(vm.q) > w - 1:
            a(f"s_waitcnt vmcnt({w-1})")
            vm.q = vm.q[len(vm.q) - (w - 1):]
    def issueKV(tile, win=0, lo=0, hi=8):
        kind, j = tile
        srd = S_K if kind == "K" else S_V
        for i in range(lo, hi):
            gi, jj = divmod(i, 4)
            if jj == 0 or i == lo:
                a(f"s_add_u32 m0, s47, {page[tile]*PAGE+gi*4096}")
                a(f"s_add_u32 s57, s91, {j*8192+gi*4096}")
                a(f"s_and_b32 s57, s57, 0x1ffff")
            gg = GK + jj if kind == "K" else GV
            window(win)
            a(f"buffer_load_dwordx4 v{gg}, {sr(srd,4)}, s57 offen offset:{jj*1024}{ntkv} lds")
            vm.issue(tile)
    issueX(0); issueW(0); issueW(1)
    make_srd(a, S_K, 10, "s43", 131072)
    make_srd(a, S_V, 12, "s43", 131072)
    a(f"""
    s_lshl_b32 s91, s{S_B}, 1
    s_add_u32 s91, s91, s{S_U}
    s_lshl_b32 s91, s91, {13 if opt.get("phase", True) else 17}
    v_xor_b32 v3, v2, v1                ; p ^ (l/16)
    v_lshlrev_b32 v3, 4, v3
    v_lshl_add_u32 v{GK}, v1, 8, v3
    v_xor_b32 v{GK+1}, 64, v{GK}
    v_xor_b32 v{GK+2}, 128, v{GK}
    v_xor_b32 v{GK+3}, 192, v{GK}
    s_mul_i32 s41, s{S_OCT}, {1024*1280}
    s_mul_i32 s42, s{S_J}, 320
    s_add_u32 s41, s41, s42
    s_sub_u32 s42, {1024*1280}, s42
    """)
    make_srd(a, S_WO, 18, "s41", "s42")
    a(f"""
    s_lshr_b32 s41, s2, 3
    s_lshl_b32 s41, s41, 1
    s_add_u32 s41, s41, s{S_U}
    s_lshl_b32 s42, s{S_OCT}, 6
    s_add_u32 s41, s41, s42
    s_mul_i32 s41, s41, {16*1280}
    s_cmp_eq_u32 s{S_U}, 0
    s_cselect_b32 s78, s{S_QUAD}, s{S_GRP}
    s_cselect_b32 s79, s{S_J}, s{S_OCT}         ; member
    s_lshl_b32 s42, s78, 9
    s_lshl_b32 s44, s{S_U}, 15
    s_add_u32 s42, s42, s44
    s_add_u32 s42, s42, {WS_F}
    """)
    make_srd(a, S_WW, 18, "s41", 16 * 1280)
    make_srd(a, S_FL, 16, "s42", 512)
    a(f"""
    s_lshl_b32 s44, s79, 7
    v_mov_b32 v26, s44
    v_mov_b32 v27, 0
    ; poll offsets: lanes 0..2 -> members (m+1+lane)%4
    v_and_b32 v28, 3, v{L}
    v_min_u32 v28, 2, v28
    s_add_u32 s44, s79, 1
    v_add_u32 v28, s44, v28
    v_and_b32 v28, 3, v28
    v_lshlrev_b32 v28, 7, v28
    s_lshr_b32 s44, s78, 2
    s_lshl_b32 s44, s44, 4
    v_mov_b32 v29, s44
    v_lshlrev_b32 v30, 4, v{L}
    s_movk_i32 s49, 3277
    """)
    for i in range(5):
        a(f"""
        v_add_u32 v1, {64*i}, v{L}          ; n
        v_mul_u32_u24 v2, s49, v1
        v_lshrrev_b32 v2, 16, v2            ; row
        v_mul_u32_u24 v3, 20, v2
        v_sub_u32 v3, v1, v3                ; g
        v_mul_u32_u24 v2, 1280, v2
        v_lshl_add_u32 v{GO+i}, v3, 4, v2
        """)
        if 0 < i < 4:
            a(f"v_subrev_u32 v{GO+i}, {1024*i}, v{GO+i}")
    a(f"s_mul_i32 s95, s{S_U}, 10240")
    def issueWO(c, win=0):
        m, cc = divmod(c, 4)
        a(f"""
        s_add_u32 s49, s{S_J}, {m}
        s_and_b32 s49, s49, 3
        s_lshl_b32 s49, s49, 1
        s_add_u32 s49, s49, s{S_U}
        s_mul_i32 s49, s49, {128*1280}
        """)
        for grp in range(2):
            a(f"s_add_u32 m0, s95, {wo_slot(c)+grp*5120}")
            a(f"s_add_u32 s57, s49, {(cc*32+grp*16)*1280}")
            for i in range(4):
                a(f"buffer_load_dwordx4 v{GO+i}, {sr(S_WO,4)}, s57 offen offset:{i*1024} lds")
            a(f"s_add_u32 m0, s95, {wo_slot(c)+grp*5120+4096}")
            a("s_nop 0")
            a(f"buffer_load_dwordx4 v{GO+4}, {sr(S_WO,4)}, s57 offen lds")
        vm.issue(("WO", c), 10)
    nwarm = [0]
    def warm(n, win=0):
        for i in range(nwarm[0], min(20, nwarm[0] + n)):
            if i % 4 == 0 or i == nwarm[0]: a(f"s_mov_b32 s57, {(i//4)*4096}")
            window(win)
            a(f"buffer_load_dwordx4 v[32:35], v30, {sr(S_WW,4)}, s57 offen offset:{(i%4)*1024}")
            vm.issue("warm")
        nwarm[0] = min(20, nwarm[0] + n)
    WIN = opt.get("win", 11)
    tiles = seq_tiles()
    nxt = [0]
    def issue_stream(limit_ev, count=None, win=0):
        n = 0
        while nxt[0] < len(tiles) * 8 and (count is None or n < count):
            ti, i = divmod(nxt[0], 8)
            if ev_order(avail[tiles[ti]]) > ev_order(limit_ev): break
            k = 8 - i if count is None else min(8 - i, count - n)
            issueKV(tiles[ti], win, i, i + k)
            nxt[0] += k; n += k
    classes = opt.get("classes", [{"bursts":{"2":16,"6":16,"10":8},"warms":{"10":8,"14":12}},{"bursts":{"4":16,"8":16,"12":8},"warms":{"12":8,"16":12}}])
    tailb = opt.get("tailb", {"18": 10, "19": 4})
    defer = opt.get("defer", True)
    issueW(2); issueW(3); issueX(1); issueW(4)
    ncl = len(classes)
    if ncl > 1:
        a(f"s_lshr_b32 s44, s2, {opt.get('class_shift', 3)}")
        if ncl == 3:
            a("""
            s_and_b32 s44, s44, 31
            s_mul_i32 s49, s44, 43
            s_lshr_b32 s49, s49, 7
            s_mul_i32 s49, s49, 3
            s_sub_u32 s44, s44, s49
            """)
        else:
            a(f"s_and_b32 s44, s44, {ncl-1}")
        for ci in range(1, ncl):
            a(f"s_cmp_eq_u32 s44, {ci}")
            a(f"s_cbranch_scc1 K_cls{ci}")
    q0 = list(vm.q); final = None
    for ci, cl in enumerate(classes):
        if ci: a(f"K_cls{ci}:")
        vm.q = list(q0); nxt[0] = 0; nwarm[0] = 0
        bursts = dict(cl.get("bursts", {})); bursts.update(tailb)
        warms = cl.get("warms", {})
        wnext = 5; xnext = 2
        hold = -1
        for st in range(20):
            vm.wait(("X", st // 2)); vm.wait(("W", 2 * st)); vm.wait(("W", 2 * st + 1))
            a("s_barrier")
            wmax = min(39, 2 * st + 6); xmax = min(9, st // 2 + 1)
            budget = 0 if st == hold else (opt.get("catch", 3) if st < 16 else 9)
            need_w = min(39, 2 * st + 3); need_x = min(9, (st + 1) // 2)
            while budget > 0 or wnext <= need_w or xnext <= need_x:
                if xnext <= xmax and (wnext > wmax or 4 * xnext <= wnext):
                    issueX(xnext); xnext += 1
                elif wnext <= wmax:
                    issueW(wnext); wnext += 1; budget -= 1
                else:
                    break
            nb = bursts.get(str(st), 0); nw = warms.get(str(st), 0)
            if nb: issue_stream(("q", st), nb)
            if nw: warm(nw)
            if (nb or nw) and defer and st < 16: hold = st + 1
        assert wnext == 40 and xnext == 10
        state = (list(vm.q), nxt[0], nwarm[0])
        assert final is None or final == state, (final, state)
        final = state
        if ci < ncl - 1: a("s_branch K_clsj")
    if ncl > 1: a("K_clsj:")
    vm.wait(("K", 0))
    a("s_barrier                    ; QE")
    wo_next = [0]
    def issue_wo_avail(ev, maxn):
        n = 0
        while wo_next[0] < 8 and n < maxn and ev_order(wop[wo_next[0]][1]) <= ev_order(ev):
            issueWO(wo_next[0]); wo_next[0] += 1; n += 1
    def need_idx(t):
        return min(len(tiles), 2 * t + 3) * 8
    ev = ("qe",)
    RATE = opt.get("rate", 10)
    for t in range(17):
        tgt = min(len(tiles) * 8, max(need_idx(t) + WIN, nxt[0] + (opt.get("rate0", 8) if t == 0 else RATE)))
        if tgt > nxt[0]: issue_stream(ev, tgt - nxt[0], WIN)
        if opt.get("verbose"): print("B", t, "issued", nxt[0], "need", need_idx(t))
        if t == opt.get("warm_at", 99): warm(20, WIN)
        if t == 12:
            a(f"global_load_dword v31, v29, s[{S_DBG}:{S_DBG+1}] sc1")
            vm.issue("init")
        if t == 14:
            li = a.label("K_init")
            vm.wait("init")
            a(f"""
            {li}:
            v_readfirstlane_b32 s94, v31
            s_cmp_lg_u32 s94, 0
            s_cbranch_scc1 {li}_done
            s_sleep 4
            global_load_dword v31, v29, s[{S_DBG}:{S_DBG+1}] sc1
            s_waitcnt vmcnt(0)
            s_branch {li}
            {li}_done:
            """)
        if t >= opt.get("wo_from", 10): issue_wo_avail(ev, min(1 if t < 15 else 8, opt.get("wo_pre", 8) - wo_next[0]))
        if t < 16:
            if t < 15: vm.wait(("K", t + 1))
            vm.wait(("V", t))
        else:
            for c_ in range(4):
                assert c_ < wo_next[0]
                vm.wait(("WO", c_))
        a(f"s_barrier                  ; B_{t}")
        ev = ("b", t)
    assert nxt[0] == len(tiles) * 8 and nwarm[0] == 20
    if opt.get("notail"): a("s_endpgm")
    def sigpoll(u):
        lp = a.label("K_poll")
        a(f"""
        s_cmp_eq_u32 s{S_U}, {u}
        s_cbranch_scc0 {lp}_done
        v_mov_b32 v27, s94
        s_mov_b64 exec, 1
        buffer_store_dword v27, v26, {sr(S_FL,4)}, 0 offen sc1
        s_mov_b64 exec, 7
        {lp}:
        buffer_load_dword v31, v28, {sr(S_FL,4)}, 0 offen sc1
        s_waitcnt vmcnt(0)
        v_cmp_eq_u32 vcc, s94, v31
        s_and_b32 s49, vcc_lo, 7
        s_cmp_eq_u32 s49, 7
        s_cbranch_scc1 {lp}_ok
        s_sleep 1
        s_branch {lp}
        {lp}_ok:
        s_mov_b64 exec, -1
        {lp}_done:
        """)
    issue_wo_avail(ev, opt.get("wo_pre", 8) - wo_next[0])
    a("s_barrier           ; SB")
    if opt.get("wo_mid", True): issue_wo_avail(ev, 8)
    sigpoll(0)
    issue_wo_avail(ev, 8)
    assert wo_next[0] == 8
    vm.wait(("WO", 4))
    a("s_barrier           ; RB")
    nfree = RB_AT // 10
    wn = 8
    while wn < 8 + nfree:
        issueWO(wn); wn += 1
    for ch in range(5, 16):
        vm.wait(("WO", ch))
        a(f"s_barrier                  ; OB_{ch}")
        k = 0
        while wn < 16 and wn <= ch + 6 and k < 2:
            issueWO(wn); wn += 1; k += 1
    a("s_barrier           ; X1")
    a("s_barrier           ; F0")
    sigpoll(1)
    a("s_barrier           ; F1")
    a("""
    K_end:
    s_endpgm
    """)
    ld_text = a.text()
    head, rest = att_text.split("    s_cbranch_scc1 K_loader\n")
    body = head + "    s_cbranch_scc0 K_att\n" + ld_text + "K_att:\n" + rest
    return dict(name=NAME + "_kernel", body=body, grid=256, block=512, lds=163840, vgpr=256, sgpr=102)

if __name__ == "__main__":
    out = sys.argv[1] if len(sys.argv) > 1 else "v6.s"
    opt = json.loads(sys.argv[2]) if len(sys.argv) > 2 else {}
    write_file(out, [kernel(opt)])
    if opt.get("stamp"):
        open(out, "a").write("; STAMPS " + json.dumps(STAMPS) + "\n")
```

```python
import sys, math, struct, json
from asmlib import *
from gen import f2u, QSCALE, THRESH, Cnt, vr, sr, mfma, make_srd, tr_lane_addr

WS_O = 0
WS_P = 16 << 20
WS_F = 40 << 20
WS_T = 64 << 20

STAMPS = []
def stamp(a, opt, name):
    if not opt.get("stamp"): return
    if name not in STAMPS: STAMPS.append(name)
    a(f"""
    s_memrealtime s[92:93]
    s_memtime s[88:89]
    s_waitcnt lgkmcnt(0)
    v_writelane_b32 v255, s92, {STAMPS.index(name)}
    v_writelane_b32 v255, s88, {32+STAMPS.index(name)}
    """)
def stamp_flush(a, opt):
    if not opt.get("stamp"): return
    if opt.get("dbgstamp"):
        sel = ["q0", "q8", "Qend", "a0", "a4", "a8", "a15", "stissue", "rb1", "opend", "f1", "done"]
        a(f"""
        s_lshl_b32 s88, s2, 3
        s_add_u32 s88, s88, s{S_WAVE}
        s_cmp_eq_u32 s88, {(opt['dbgstamp']-1)*8}
        s_cbranch_scc0 K_nodbg
        v_readlane_b32 s89, v255, 0
        s_mov_b64 exec, 1
        """)
        for i, nm in enumerate(sel):
            dw = (i // 3) * 4 + 1 + i % 3
            a(f"""
            v_readlane_b32 s90, v255, {STAMPS.index(nm)}
            s_nop 3
            s_sub_u32 s90, s90, s89
            v_mov_b32 v252, s90
            v_mov_b32 v253, {dw*4}
            global_store_dword v253, v252, s[{S_DBG}:{S_DBG+1}]
            s_nop 1
            """)
        a("s_mov_b64 exec, -1")
        a("K_nodbg:")
    a(f"""
    s_lshl_b32 s88, s2, 3
    s_add_u32 s88, s88, s{S_WAVE}
    s_lshl_b32 s88, s88, 8
    s_add_u32 s88, s88, {WS_T}
    """)
    make_srd(a, 84, 16, "s88", 256)
    a(f"""
    v_lshlrev_b32 v254, 2, v{V_LANE}
    buffer_store_dword v255, v254, s[84:87], 0 offen
    """)

S_X, S_W, S_K, S_V, S_O = 20, 24, 28, 32, 36
S_WAVE, S_OCT, S_U, S_QT, S_J = 40, 60, 61, 62, 63
S_WO, S_OQ, S_PP = 64, 68, 72
S_DBG = 76
S_FL, S_OUT, S_PG, S_WW = 8, 12, 96, 84
S_QUAD, S_GRP = 82, 83
S_OOFF = 100
S_BR, S_B = 4, 7
PAGE, BLK = 16384, 8192
LW0, LWN = 5 * PAGE, 7
LX0, LXSZ = 5 * PAGE + 7 * BLK, 12288
def wslot(h): return (h + 1) % LWN
V_O, V_Q, V_SA, V_SB, V_CM, V_P, V_KF, V_VF = 0, 64, 96, 112, 128, 144, 152, 184
V_KA, V_VA, V_L, V_T = 216, 224, 228, 230
V_LANE = 250

def seq_tiles():
    s = [("K", 0)]
    for t in range(15):
        s += [("K", t + 1), ("V", t)]
    s.append(("V", 15))
    return s
def use_step(tile):
    k, j = tile
    return j - 1 if k == "K" else j
def plan_pages(opt):
    tiles = seq_tiles()
    page = {}; avail = {}
    first = [(0, ("q", -1)), (1, ("q", -1)), (2, ("q", -1)), (3, ("q", -1)), (4, ("q", -1)),
             (8, ("q", 18)), (5, ("q", 18)), (6, ("q", 19)), (7, ("qe",)), (9, ("qe",))]
    free = list(first)
    shrink = opt.get("shrink", 7)
    retired = {}
    for tl in tiles:
        p, ev = free.pop(0)
        page[tl] = p; avail[tl] = ev
        rel = ("b", use_step(tl) + 1)
        if p >= 6 and use_step(tl) >= shrink:
            retired[p] = rel
        else:
            free.append((p, rel))
            free.sort(key=lambda x: ev_order(x[1]))
    for p, ev in free:
        retired[p] = ev
    return page, avail, retired
def ev_order(ev):
    if ev[0] == "q": return ev[1]
    if ev[0] == "qe": return 20
    return 21 + ev[1]

def wo_plan(retired):
    out = []
    for s in range(8):
        lo, hi = s * 20480, (s + 1) * 20480 - 1
        ev = max((retired[p] for p in range(lo // PAGE, hi // PAGE + 1)), key=ev_order)
        out.append((s, ev))
    out.sort(key=lambda x: ev_order(x[1]))
    return out

def kernel(opt):
    a = Asm()
    page, avail, retired = plan_pages(opt)
    wop = wo_plan(retired)
    SLOT_ORDER = [s for s, _ in wop]
    def wo_slot(c): return SLOT_ORDER[c % 8] * 20480
    if opt.get("verbose"):
        print({f"{k}{j}": (page[(k, j)], avail[(k, j)]) for k, j in seq_tiles()}); print(wop)
    ntkv = " nt" if opt.get("nt_kv", True) else ""
    L = V_LANE
    a(f"""
    s_cmp_ge_u32 s2, 256
    s_cbranch_scc1 K_end
    s_and_b32 s3, s2, 7
    s_lshr_b32 s{S_BR}, s3, 2      ; branch
    s_mul_i32 s5, s{S_BR}, 40
    s_load_dwordx8 s[8:15], s[0:1], s5      ; x, k, v, wq
    s_load_dwordx2 s[18:19], s[0:1], s5 offset:32   ; wo
    s_load_dwordx2 s[16:17], s[0:1], 96     ; ws
    s_load_dwordx2 s[76:77], s[0:1], 88     ; debug
    s_load_dwordx2 s[80:81], s[0:1], 80     ; out
    v_lshrrev_b32 v1, 6, v0
    v_and_b32 v{L}, 63, v0
    v_readfirstlane_b32 s{S_WAVE}, v1
    s_and_b32 s{S_OCT}, s3, 3
    s_lshr_b32 s6, s2, 3           ; idx 0..31
    s_and_b32 s{S_B}, s6, 7        ; b
    s_lshr_b32 s{S_J}, s6, 3       ; j 0..3
    s_lshr_b32 s{S_U}, s{S_WAVE}, 2
    s_and_b32 s{S_QT}, s{S_WAVE}, 3
    s_lshl_b32 s3, s{S_OCT}, 3
    s_lshl_b32 s6, s{S_J}, 1
    s_add_u32 s6, s6, s3
    s_add_u32 s6, s6, s{S_U}       ; h = 8*oct + 2*j + u
    s_lshl_b32 s43, s{S_B}, 5
    s_add_u32 s43, s43, s6         ; b*32+h
    s_lshl_b32 s47, s{S_U}, 13     ; u*8192
    s_lshl_b32 s48, s{S_U}, 12     ; u*4096
    s_lshl_b32 s44, s{S_BR}, 3
    s_add_u32 s44, s44, s{S_B}
    s_lshl_b32 s44, s44, 2         ; (br*8+b)*4
    s_add_u32 s{S_QUAD}, s44, s{S_OCT}
    s_add_u32 s{S_GRP}, s44, s{S_J}
    s_cmp_eq_u32 s{S_QT}, 3
    s_cbranch_scc1 K_loader
    """)
    stamp(a, opt, "start")
    WB, XB = 230, 238
    tr_lane_addr(a, WB, L, 1, 2, 8, 256, True)
    a(f"s_add_u32 s49, s48, {LW0}")
    a(f"v_add_u32 v{WB}, s49, v{WB}")
    for t in range(1, 4):
        a(f"v_xor_b32 v{WB+t}, {64*t}, v{WB}")
    a(f"""
    v_and_b32 v1, 31, v{L}              ; j
    v_lshrrev_b32 v2, 5, v{L}           ; h
    v_bfe_u32 v3, v1, 1, 3              ; (j/2)%8
    v_xor_b32 v2, v2, v3
    v_lshlrev_b32 v2, 4, v2
    v_lshl_add_u32 v2, v1, 7, v2
    s_lshl_b32 s49, s{S_QT}, 12         ; qt*32*128
    s_add_u32 s49, s49, {LX0}
    v_add_u32 v{XB}, s49, v2
    v_xor_b32 v{XB+1}, 32, v{XB}
    v_xor_b32 v{XB+2}, 64, v{XB}
    v_xor_b32 v{XB+3}, 96, v{XB}
    v_and_b32 v1, 31, v{L}              ; i
    v_lshrrev_b32 v2, 5, v{L}           ; h
    v_and_b32 v3, 15, v1
    v_xor_b32 v2, v2, v3
    v_lshlrev_b32 v2, 4, v2
    v_lshl_add_u32 v{V_KA}, v1, 8, v2
    v_add_u32 v{V_KA}, s47, v{V_KA}
    """)
    for s in range(1, 8):
        a(f"v_xor_b32 v{V_KA+s}, {32*s}, v{V_KA}")
    tr_lane_addr(a, V_VA, L, 1, 2, 4, 256, True)
    a(f"v_add_u32 v{V_VA}, s47, v{V_VA}")
    for t in range(1, 4):
        a(f"v_xor_b32 v{V_VA+t}, {64*t}, v{V_VA}")
    QA = V_KF
    for i in range(64):
        a(f"v_mov_b32 v{V_O+i}, 0")
    a(f"v_mov_b32 v{V_L}, 0")
    a(f"v_mov_b32 v{V_L+1}, 0")
    a(f"""
    s_waitcnt lgkmcnt(0)
    s_lshl_b32 s44, s{S_BR}, 8
    s_add_u32 s44, s44, s43
    s_mul_i32 s44, s44, 24576
    s_mul_i32 s41, s{S_QUAD}, {8*24576}
    s_lshl_b32 s42, s{S_GRP}, 2
    s_mul_i32 s45, s42, 30720
    s_add_u32 s45, s45, {WS_P}
    s_mul_i32 s46, s{S_OCT}, 30720
    s_add_u32 s46, s46, s45
    """)
    make_srd(a, S_O, 16, "s44", 24576)
    make_srd(a, S_OQ, 16, "s41", 8 * 24576)
    make_srd(a, S_PG, 16, "s45", 4 * 30720)
    make_srd(a, S_PP, 16, "s46", 30720)
    make_srd(a, S_OUT, 80, None, 8 * 96 * 2560)
    a(f"""
    s_mul_i32 s41, s{S_B}, 96
    s_lshl_b32 s42, s{S_QT}, 5
    s_add_u32 s41, s41, s42
    s_lshl_b32 s42, s{S_OCT}, 3
    s_add_u32 s41, s41, s42
    s_mul_i32 s41, s41, 2560
    s_mul_i32 s42, s{S_BR}, 1280
    s_add_u32 s41, s41, s42
    s_mul_i32 s42, s{S_J}, 320
    s_add_u32 s41, s41, s42
    s_mul_i32 s42, s{S_U}, 160
    s_add_u32 s{S_OOFF}, s41, s42
    s_mov_b32 s53, {hex(f2u(QSCALE))}
    s_mov_b32 s54, {hex(f2u(THRESH))}
    """)
    a(f"""
    s_add_u32 s95, s{S_OCT}, s{S_J}
    s_add_u32 s95, s95, s{S_WAVE}
    s_lshr_b32 s78, s{S_QUAD}, 2
    s_lshl_b32 s42, s78, 11
    s_add_u32 s42, s42, {WS_F}
    """)
    make_srd(a, S_FL, 16, "s42", 32768 + 2048)
    a(f"""
    v_and_b32 v246, 15, v{L}
    v_lshlrev_b32 v246, 7, v246
    v_bfe_u32 v247, v{L}, 4, 1
    v_lshlrev_b32 v247, 15, v247
    v_add_u32 v246, v246, v247
    s_lshl_b32 s44, s78, 4
    v_mov_b32 v248, s44
    s_cmp_eq_u32 s95, 0
    s_cbranch_scc0 K_nz
    buffer_load_dword v247, v246, {sr(S_FL,4)}, 0 offen sc1
    K_nz:
    """)
    AFs, BFs = [96, 64], [128, 144]
    for st in range(21):
        if st == 6:
            a(f"""
            s_cmp_eq_u32 s95, 0
            s_cbranch_scc0 K_na
            s_waitcnt vmcnt(0)
            s_mov_b32 s44, 0
            K_pick:
            s_add_u32 s44, s44, 1
            v_cmp_eq_u32 vcc, s44, v247
            s_cbranch_vccnz K_pick
            v_mov_b32 v249, s44
            s_mov_b64 exec, 1
            global_store_dword v248, v249, s[{S_DBG}:{S_DBG+1}] sc1
            s_mov_b64 exec, -1
            K_na:
            """)
        if st < 20:
            a("s_barrier")
            if st in (0, 4, 8, 12, 16): stamp(a, opt, f"q{st}")
        reads = []
        if st < 20 and not opt.get("q_noread"):
            AF, BF = AFs[st % 2], BFs[st % 2]
            xo_ = ((st // 2) % 2) * LXSZ
            for ks in range(2):
                wo_ = wslot(2 * st + ks) * BLK
                reads.append(f"ds_read_b128 {vr(BF+4*ks,4)}, v{XB+2*(st%2)+ks} offset:{xo_}")
                for t in range(4):
                    r = AF + 16 * ks + 4 * t
                    reads.append(f"ds_read_b64_tr_b16 {vr(r,2)}, v{WB+t} offset:{wo_}")
                    reads.append(f"ds_read_b64_tr_b16 {vr(r+2,2)}, v{WB+t} offset:{wo_+1024}")
        nrd = 0
        def rd(n):
            nonlocal nrd
            for _ in range(n):
                if reads:
                    a(reads.pop(0)); nrd += 1
                    if nrd == 14:
                        a("s_waitcnt lgkmcnt(10)")
        if 0 < st < 20 and opt.get("q_nomfma"):
            rd(99)
            a("s_sleep 7")
        elif 0 < st < 20:
            AF, BF = AFs[(st - 1) % 2], BFs[(st - 1) % 2]
            for ks in range(2):
                for t in range(4):
                    mfma(a, QA + 16 * t, AF + 16 * ks + 4 * t, BF + 4 * ks, None if (st == 1 and ks == 0) else QA + 16 * t)
                    rd(3)
        rd(99)
        if st < 20:
            a("s_waitcnt lgkmcnt(0)")
        if st == 19:
            a("s_barrier")
    stamp(a, opt, "Qend")
    AF, BF = AFs[1], BFs[1]
    KP = 96
    c = Cnt(a, "lgkmcnt", 15)
    kbase = 0; vbase = 0
    for s in range(8):
        a(f"ds_read_b128 {vr(KP+4*s,4)}, v{V_KA+s} offset:{page[('K',0)]*PAGE}")
        c.issue(("K", s))
    for t in range(4):
        for ks in range(2):
            mfma(a, QA + 16 * t, AF + 16 * ks + 4 * t, BF + 4 * ks, QA + 16 * t)
    a("s_nop 5")
    SP = V_CM
    for t in range(4):
        for i in range(8):
            r = QA + 16 * t + 2 * i
            a(f"v_mul_f32 v{r}, s53, v{r}")
            a(f"v_mul_f32 v{r+1}, s53, v{r+1}")
            a(f"v_cvt_pk_bf16_f32 v{V_Q+8*t+i}, v{r}, v{r+1}")
            if t > 0 and i in (1, 5):
                s = 2 * (t - 1) + (i // 4)
                c.wait(("K", s))
                mfma(a, SP, KP + 4 * s, V_Q + 4 * s, None if s == 0 else SP)
    a("s_nop 1")
    for s in (6, 7):
        c.wait(("K", s))
        mfma(a, SP, KP + 4 * s, V_Q + 4 * s, SP)
    a("s_barrier")
    T = V_T
    def maxtree(S, emit):
        emit(f"v_max3_f32 v{T}, v{S}, v{S+1}, v{S+2}")
        emit(f"v_max3_f32 v{T+1}, v{S+3}, v{S+4}, v{S+5}")
        emit(f"v_max3_f32 v{T+2}, v{S+6}, v{S+7}, v{S+8}")
        emit(f"v_max3_f32 v{T+3}, v{S+9}, v{S+10}, v{S+11}")
        emit(f"v_max3_f32 v{T+4}, v{S+12}, v{S+13}, v{S+14}")
        emit(f"v_max3_f32 v{T}, v{T}, v{T+1}, v{S+15}")
        emit(f"v_max3_f32 v{T+2}, v{T+2}, v{T+3}, v{T+4}")
        emit(f"v_max_f32 v{T}, v{T}, v{T+2}")
    a("s_nop 11")
    maxtree(SP, a)
    a(f"""
    v_mov_b32 v{T+1}, v{T}
    s_nop 1
    v_permlane32_swap_b32 v{T}, v{T+1}
    v_max_f32 v{T}, v{T}, v{T+1}
    """)
    for i in range(16):
        a(f"v_sub_f32 v{V_SA+i}, v{SP+i}, v{T}")
        a(f"v_sub_f32 v{V_CM+i}, 0, v{T}")
    rare = []
    def rebase(cur, pg, regs, n):
        if cur <= pg <= cur + 3: return cur
        new = min(pg, 6) if pg > cur else max(0, pg - 0)
        d = (new - cur) * PAGE
        for i in range(n):
            if d > 0: a(f"v_add_u32 v{regs+i}, {d}, v{regs+i}")
            else: a(f"v_subrev_u32 v{regs+i}, {-d}, v{regs+i}")
        return new
    for t_ in range(16):
        Scur, Snxt = (V_SA, V_SB) if t_ % 2 == 0 else (V_SB, V_SA)
        do_qk = t_ < 15
        if do_qk:
            kbase = rebase(kbase, page[("K", t_ + 1)], V_KA, 8)
            kreg = (page[("K", t_ + 1)] - kbase) * PAGE
        vbase = rebase(vbase, page[("V", t_)], V_VA, 4)
        vreg = (page[("V", t_)] - vbase) * PAGE
        if t_ > 0:
            a(f"s_barrier              ; B_{t_}")
        if t_ % opt.get("astamp", 4) == 0 or t_ == 15: stamp(a, opt, f"a{t_}")
        if opt.get("a_nocompute"): continue
        c = Cnt(a, "lgkmcnt", 15)
        def half_ops(u):
            b = Scur + 8 * u
            ops = [f"v_exp_f32 v{b+i}, v{b+i}" for i in range(8)]
            seq = [ops[0], ops[1]]
            for i in range(2, 8):
                seq.append(ops[i])
                seq.append(f"v_add_f32 v{V_L+(i%2)}, v{V_L+(i%2)}, v{b+i-2}")
                if i % 2 == 1:
                    seq.append(f"v_cvt_pk_bf16_f32 v{V_P+4*u+(i-3)//2}, v{b+i-3}, v{b+i-2}")
            seq.append(f"v_add_f32 v{V_L}, v{V_L}, v{b+6}")
            seq.append(f"v_add_f32 v{V_L+1}, v{V_L+1}, v{b+7}")
            seq.append(f"v_cvt_pk_bf16_f32 v{V_P+4*u+3}, v{b+6}, v{b+7}")
            return seq
        q0 = half_ops(0); q1 = half_ops(1)
        def rdV(i):
            u, t = divmod(i, 4)
            r = V_VF + 4 * i
            a(f"ds_read_b64_tr_b16 {vr(r,2)}, v{V_VA+t} offset:{vreg+u*4096}")
            a(f"ds_read_b64_tr_b16 {vr(r+2,2)}, v{V_VA+t} offset:{vreg+u*4096+2048}")
            c.issue(("V", i), 2)
        fill = q0 + q1
        def emit_fill(n):
            for _ in range(n):
                if fill:
                    a(fill.pop(0))
        if do_qk:
            for s in range(8):
                a(f"ds_read_b128 {vr(V_KF+4*s,4)}, v{V_KA+s} offset:{kreg}")
                c.issue(("K", s))
            emit_fill(8)
            for s in range(8):
                c.wait(("K", s))
                mfma(a, Snxt, V_KF + 4 * s, V_Q + 4 * s, V_CM if s == 0 else Snxt)
                if s < 7:
                    rdV(s)
                emit_fill(3)
        else:
            for i in range(7):
                rdV(i)
            emit_fill(len(q0))
        while len(fill) > len(q1):
            emit_fill(1)
        mx = []
        if do_qk:
            maxtree(Snxt, mx.append)
        a("s_nop 1")
        for i in range(8):
            u, t = divmod(i, 4)
            if i == 4:
                emit_fill(len(fill))
                a("s_nop 1")
            c.wait(("V", i))
            mfma(a, V_O + 16 * t, V_VF + 4 * i, V_P + 4 * u, V_O + 16 * t)
            if i == 0:
                rdV(7)
            if i < 4:
                emit_fill(4)
            else:
                for _ in range(2):
                    if mx: a(mx.pop(0))
        if do_qk:
            assert not mx
            lr = a.label("K_rare"); lb = a.label("K_back")
            a(f"v_cmp_lt_f32 vcc, s54, v{T}")
            a(f"s_cbranch_vccnz {lr}")
            a(f"{lb}:")
            rare.append((lr, lb, Snxt))
    a("s_barrier")
    stamp(a, opt, "attend")
    if opt.get("notail"):
        stamp_flush(a, opt)
        a("s_endpgm")
    VL16 = 243
    a(f"""
    v_add_f32 v{V_L}, v{V_L}, v{V_L+1}
    v_lshlrev_b32 v{VL16}, 4, v{L}
    v_mov_b32 v{V_L+1}, v{V_L}
    s_lshl_b32 s55, s{S_QT}, 13
    s_add_u32 s56, s55, 4096
    v_permlane32_swap_b32 v{V_L}, v{V_L+1}
    v_add_f32 v{V_L}, v{V_L}, v{V_L+1}
    v_rcp_f32 v{V_L}, v{V_L}
    s_nop 3
    """)
    for f in range(8):
        t, u = divmod(f, 2)
        b = V_O + 16 * t + 8 * u
        for i in range(8):
            a(f"v_mul_f32 v{b+i}, v{b+i}, v{V_L}")
        d = V_KF + 4 * f
        for i in range(4):
            a(f"v_cvt_pk_bf16_f32 v{d+i}, v{b+2*i}, v{b+2*i+1}")
        so = "s55" if f < 4 else "s56"
        a(f"buffer_store_dwordx4 {vr(d,4)}, v{VL16}, {sr(S_O,4)}, {so} offen offset:{(f%4)*1024}{opt.get('ost', ' sc1')}")
    stamp(a, opt, "stissue")
    ACC, AFR, NF = 0, 80, 8
    OWN = V_KF
    RF = [112 + 4 * i for i in range(10)] + [184 + 4 * i for i in range(14)]
    VA0 = 240
    def bfrag(ks): return OWN + 4 * ks if ks < 8 else RF[ks - 8]
    tr_lane_addr(a, VA0, L, 244, 245, 8, 320, False)
    a(f"""
    s_mul_i32 s49, s{S_U}, 10240
    v_add_u32 v{VA0}, s49, v{VA0}
    v_add_u32 v{VA0+1}, 61440, v{VA0}
    v_add_u32 v{VA0+2}, 122880, v{VA0}
    """)
    c = Cnt(a, "lgkmcnt", 15)
    vm = Cnt(a, "vmcnt", 63)
    AHEAD = 7
    SIG_AT = opt.get("sig_at", 6); RB_AT = opt.get("rb_at", 24)
    def rdA(i):
        ch, r = divmod(i, 10)
        ks, nt = divmod(r, 5)
        if r == 0 and ch >= 5:
            a(f"s_barrier           ; OB_{ch}")
            if ch in (8, 12): stamp(a, opt, f"ob{ch}")
        off = wo_slot(ch) + ks * 5120 + nt * 64
        va = VA0 + off // 61440
        off %= 61440
        d = AFR + 4 * (i % NF)
        a(f"ds_read_b64_tr_b16 {vr(d,2)}, v{va} offset:{off}")
        a(f"ds_read_b64_tr_b16 {vr(d+2,2)}, v{va} offset:{off+1280}")
        c.issue(i, 2)
    nrl = [0]
    for i in range(AHEAD):
        rdA(i)
    for i in range(160):
        ch, r = divmod(i, 10)
        ks, nt = divmod(r, 5)
        kk = 2 * ch + ks
        if i == SIG_AT:
            a("s_waitcnt vmcnt(0)")
            a("s_barrier")
            stamp(a, opt, "sig")
        if i == RB_AT:
            stamp(a, opt, "rb0")
            a("s_barrier")
            stamp(a, opt, "rb1")
            for m in range(1, 4):
                a(f"""
                s_add_u32 s49, s{S_J}, {m}
                s_and_b32 s49, s49, 3
                s_lshl_b32 s49, s49, 1
                s_add_u32 s49, s49, s{S_U}
                s_mul_i32 s49, s49, 24576
                s_add_u32 s{57+2*(m-1) if m < 3 else 45}, s49, s55
                s_add_u32 s{58+2*(m-1) if m < 2 else (46 if m == 3 else 44)}, s49, s56
                """)
        if i >= RB_AT:
            first = opt.get("rload_first", 8); gap = opt.get("rload_gap", 4)
            di = i - RB_AT
            want = min(24, min(first, 2 * (di + 1)) + max(0, (di - first // 2) // gap + 1 if di >= first // 2 else 0))
            while nrl[0] < want:
                q = nrl[0]; nrl[0] += 1
                m, f = divmod(q, 8)
                so = [["s57", "s58"], ["s59", "s44"], ["s45", "s46"]][m][f // 4]
                a(f"buffer_load_dwordx4 {vr(bfrag(8+q),4)}, v{VL16}, {sr(S_OQ,4)}, {so} offen offset:{(f%4)*1024} sc1")
                vm.issue(("R", 8 + q))
        if nt == 0 and kk >= 8:
            assert nrl[0] > kk - 8
            vm.wait(("R", kk))
            if kk == 8: stamp(a, opt, "r8")
        c.wait(i)
        mfma(a, ACC + 16 * nt, AFR + 4 * (i % NF), bfrag(kk), None if kk == 0 else ACC + 16 * nt)
        if i + AHEAD < 160:
            rdA(i + AHEAD)
    stamp(a, opt, "opend")
    XA = opt.get("xarea", None)
    xs = [SLOT_ORDER[c % 8] * 20480 for c in (8, 9, 10)]
    a(f"""
    s_mov_b32 s49, {xs[0]}
    s_cmp_eq_u32 s{S_QT}, 1
    s_cselect_b32 s49, {xs[1]}, s49
    s_cmp_eq_u32 s{S_QT}, 2
    s_cselect_b32 s49, {xs[2]}, s49
    s_mul_i32 s57, s{S_U}, 10240
    s_add_u32 s58, s49, s57
    s_sub_u32 s57, 10240, s57
    s_add_u32 s59, s49, s57
    v_add_u32 v244, s58, v{VL16}
    v_add_u32 v245, s59, v{VL16}
    s_mul_i32 s49, s{S_QT}, 10240
    s_mul_i32 s57, s{S_U}, 5120
    s_add_u32 s49, s49, s57
    s_add_u32 s57, s49, 4096
    s_cmp_eq_u32 s{S_U}, 0
    s_cbranch_scc0 K_x1
    """)
    for u in range(2):
        send = ACC + 40 * (1 - u); keep = ACC + 40 * u
        for i in range(10):
            a(f"ds_write_b128 v244, {vr(send+4*i,4)} offset:{i*1024}")
        a("s_waitcnt lgkmcnt(0)")
        a("s_barrier           ; X1")
        for i in range(10):
            a(f"ds_read_b128 {vr(112+4*i,4)}, v245 offset:{i*1024}")
        for f in range(5):
            a(f"s_waitcnt lgkmcnt({8-2*f})")
            for i in range(8):
                a(f"v_add_f32 v{keep+8*f+i}, v{keep+8*f+i}, v{112+8*f+i}")
            d = 184 + 4 * f
            for i in range(4):
                a(f"v_cvt_pk_bf16_f32 v{d+i}, v{keep+8*f+2*i}, v{keep+8*f+2*i+1}")
            so = "s49" if f < 4 else "s57"
            a(f"buffer_store_dwordx4 {vr(d,4)}, v{VL16}, {sr(S_PP,4)}, {so} offen offset:{(f%4)*1024} sc1")
        if u == 0:
            a("s_branch K_x2")
            a("K_x1:")
    a("K_x2:")
    stamp(a, opt, "pst")
    a(f"""
    ; item n = lane (+64): g = n/8, r = n%8 ; partial addr = (g/2)*1024 + ((g%2)*32 + 8*oct + r)*16 ; out addr = r*2560 + g*16
    v_lshrrev_b32 v1, 3, v{L}          ; g
    v_and_b32 v2, 7, v{L}              ; r
    v_lshrrev_b32 v3, 1, v1
    v_lshlrev_b32 v3, 10, v3
    v_and_b32 v4, 1, v1
    v_lshlrev_b32 v4, 9, v4
    v_add_u32 v3, v3, v4
    v_lshl_add_u32 v3, v2, 4, v3
    s_lshl_b32 s59, s{S_OCT}, 7
    v_add_u32 v3, s59, v3
    v_add_u32 v4, 4096, v3             ; round 1
    v_mul_u32_u24 v5, 2560, v2
    v_lshl_add_u32 v5, v1, 4, v5
    """)
    for g in range(4):
        a(f"s_add_u32 s{52+g}, s49, {g*30720}")
    a("s_waitcnt vmcnt(0)")
    a("s_barrier")
    stamp(a, opt, "f0")
    a("s_barrier")
    stamp(a, opt, "f1")
    for g in range(4):
        a(f"buffer_load_dwordx4 {vr(8+4*g,4)}, v3, {sr(S_PG,4)}, s{52+g} offen sc1")
    a("s_mov_b64 exec, 0xffff")
    for g in range(4):
        a(f"buffer_load_dwordx4 {vr(24+4*g,4)}, v4, {sr(S_PG,4)}, s{52+g} offen sc1")
    a("s_mov_b64 exec, -1")
    for rnd in range(2):
        A = 40 + 8 * rnd
        for g in range(4):
            a(f"s_waitcnt vmcnt({7-4*rnd-g+rnd})")
            for i in range(4):
                r = 8 + 16 * rnd + 4 * g + i
                if g == 0:
                    a(f"v_lshlrev_b32 v{A+2*i}, 16, v{r}")
                    a(f"v_and_b32 v{A+2*i+1}, 0xffff0000, v{r}")
                else:
                    a(f"v_lshlrev_b32 v6, 16, v{r}")
                    a(f"v_and_b32 v7, 0xffff0000, v{r}")
                    a(f"v_add_f32 v{A+2*i}, v{A+2*i}, v6")
                    a(f"v_add_f32 v{A+2*i+1}, v{A+2*i+1}, v7")
        for i in range(4):
            a(f"v_cvt_pk_bf16_f32 v{56+4*rnd+i}, v{A+2*i}, v{A+2*i+1}")
        if rnd == 1:
            a("s_mov_b64 exec, 0xffff")
        a(f"buffer_store_dwordx4 {vr(56+4*rnd,4)}, v5, {sr(S_OUT,4)}, s{S_OOFF} offen offset:{128*rnd}")
    a("s_mov_b64 exec, -1")
    if opt.get("stamp"):
        a("s_waitcnt vmcnt(0)")
        stamp(a, opt, "done")
        stamp_flush(a, opt)
    a("s_endpgm")
    for lr, lb, S in rare:
        a(f"""
        {lr}:
        v_mov_b32 v{T+1}, v{T}
        s_nop 1
        v_permlane32_swap_b32 v{T}, v{T+1}
        v_max_f32 v{T}, v{T}, v{T+1}
        v_max_f32 v{T}, 0, v{T}           ; delta >= 0
        v_sub_f32 v{T+1}, 0, v{T}
        v_exp_f32 v{T+1}, v{T+1}          ; 2^-delta
        s_nop 12
        """)
        for i in range(16):
            a(f"v_sub_f32 v{S+i}, v{S+i}, v{T}")
        for i in range(16):
            a(f"v_sub_f32 v{V_CM+i}, v{V_CM+i}, v{T}")
        a(f"v_mul_f32 v{V_L}, v{V_L}, v{T+1}")
        a(f"v_mul_f32 v{V_L+1}, v{V_L+1}, v{T+1}")
        for i in range(64):
            a(f"v_mul_f32 v{V_O+i}, v{V_O+i}, v{T+1}")
        a(f"s_branch {lb}")
    att_text = a.text()

    a = Asm(); a.nlabel = 1000
    GW, GX, GK, GV, GO = 4, 8, 12, 16, 20
    rotG = opt.get("rot", "g5")
    a("K_loader:")
    if rotG == "g10":
        a(f"""
        s_mul_i32 s45, s{S_J}, 3
        s_add_u32 s45, s45, s{S_B}         ; rotation = (b + 3j) % 10
        s_cmp_ge_u32 s45, 10
        s_cselect_b32 s46, 10, 0
        s_sub_u32 s45, s45, s46
        """)
    elif rotG == "g4":
        a(f"""
        s_add_u32 s45, s{S_J}, s{S_B}
        s_and_b32 s45, s45, 3
        s_mul_i32 s45, s45, 5
        s_lshr_b32 s45, s45, 1             ; 0,2,5,7
        """)
    elif rotG == "g5":
        a(f"""
        s_add_u32 s45, s{S_J}, s{S_B}      ; 0..10
        s_cmp_ge_u32 s45, 5
        s_cselect_b32 s46, 5, 0
        s_sub_u32 s45, s45, s46
        s_cmp_ge_u32 s45, 5
        s_cselect_b32 s46, 5, 0
        s_sub_u32 s45, s45, s46
        s_lshl_b32 s45, s45, 1
        """)
    a(f"""
    v_lshrrev_b32 v1, 4, v{L}           ; l/16
    v_and_b32 v2, 15, v{L}
    ; X: instr i = 2m+u : rows 8i + l/8 ; c = (l%8) ^ (l/16) ^ 4u
    v_lshrrev_b32 v17, 3, v{L}          ; l/8
    v_and_b32 v3, 7, v{L}
    v_xor_b32 v3, v3, v1
    s_lshl_b32 s49, s{S_U}, 2
    v_xor_b32 v3, s49, v3
    v_lshlrev_b32 v3, 4, v3
    v_mul_u32_u24 v17, 1280, v17
    v_add_u32 v{GX}, v17, v3
    s_mul_i32 s49, s{S_U}, 10240
    v_add_u32 v{GX}, s49, v{GX}
    v_add_u32 v{GX+1}, {20480-2048}, v{GX}
    v_lshlrev_b32 v3, 2, v1
    v_xor_b32 v3, v2, v3                ; c = p ^ 4*(l/16)
    v_lshlrev_b32 v3, 4, v3
    v_lshl_add_u32 v{GV}, v1, 8, v3
    v_lshl_add_u32 v{GW}, v1, 13, v3    ; (l/16)*8192 + c*16
    v_add_u32 v{GW+1}, {1*(32768-1024)}, v{GW}
    v_add_u32 v{GW+2}, {2*(32768-1024)}, v{GW}
    v_add_u32 v{GW+3}, {3*(32768-1024)}, v{GW}
    s_lshl_b32 s50, s{S_U}, 10
    s_mov_b32 s51, s45
    s_lshl_b32 s52, s45, 2
    s_mul_i32 s41, s{S_B}, 122880       ; x offset
    s_lshl_b32 s42, s6, 8
    s_sub_u32 s46, {640*8192}, s42
    s_lshl_b32 s43, s43, 17
    s_waitcnt lgkmcnt(0)
    """)
    make_srd(a, S_X, 8, "s41", 122880)
    make_srd(a, S_W, 14, "s42", "s46")
    vm = Cnt(a, "vmcnt", 63)
    def issueX(i):
        for g in range(3):
            a(f"s_add_u32 m0, s50, {LX0+(i%2)*LXSZ+g*4096}")
            a(f"s_lshl_b32 s57, s51, 7")
            if g:
                a(f"s_add_u32 s57, s57, {g*40960}")
            for m in range(2):
                a(f"buffer_load_dwordx4 v{GX+m}, {sr(S_X,4)}, s57 offen offset:{m*2048} lds")
                vm.issue(("X", i))
        a(f"""
        s_add_u32 s51, s51, 1
        s_cmp_ge_u32 s51, 10
        s_cselect_b32 s51, 0, s51
        """)
    def issueW(h):
        a(f"s_add_u32 m0, s48, {LW0+wslot(h)*BLK}")
        a(f"s_lshl_b32 s57, s52, 17")
        for j in range(4):
            a(f"buffer_load_dwordx4 v{GW+j}, {sr(S_W,4)}, s57 offen offset:{j*1024} lds")
            vm.issue(("W", h))
        a(f"""
        s_add_u32 s52, s52, 1
        s_cmp_ge_u32 s52, 40
        s_cselect_b32 s52, 0, s52
        """)
    def window(w):
        if w and len(vm.q) > w - 1:
            a(f"s_waitcnt vmcnt({w-1})")
            vm.q = vm.q[len(vm.q) - (w - 1):]
    def issueKV(tile, win=0, lo=0, hi=8):
        kind, j = tile
        srd = S_K if kind == "K" else S_V
        for i in range(lo, hi):
            gi, jj = divmod(i, 4)
            if jj == 0 or i == lo:
                a(f"s_add_u32 m0, s47, {page[tile]*PAGE+gi*4096}")
                a(f"s_add_u32 s57, s91, {j*8192+gi*4096}")
                a(f"s_and_b32 s57, s57, 0x1ffff")
            gg = GK + jj if kind == "K" else GV
            window(win)
            a(f"buffer_load_dwordx4 v{gg}, {sr(srd,4)}, s57 offen offset:{jj*1024}{ntkv} lds")
            vm.issue(tile)
    issueX(0); issueW(0); issueW(1)
    make_srd(a, S_K, 10, "s43", 131072)
    make_srd(a, S_V, 12, "s43", 131072)
    a(f"""
    s_lshl_b32 s91, s{S_B}, 1
    s_add_u32 s91, s91, s{S_U}
    s_lshl_b32 s91, s91, {13 if opt.get("phase", True) else 17}
    v_xor_b32 v3, v2, v1                ; p ^ (l/16)
    v_lshlrev_b32 v3, 4, v3
    v_lshl_add_u32 v{GK}, v1, 8, v3
    v_xor_b32 v{GK+1}, 64, v{GK}
    v_xor_b32 v{GK+2}, 128, v{GK}
    v_xor_b32 v{GK+3}, 192, v{GK}
    s_mul_i32 s41, s{S_OCT}, {1024*1280}
    s_mul_i32 s42, s{S_J}, 320
    s_add_u32 s41, s41, s42
    s_sub_u32 s42, {1024*1280}, s42
    """)
    make_srd(a, S_WO, 18, "s41", "s42")
    a(f"""
    s_lshr_b32 s41, s2, 3
    s_lshl_b32 s41, s41, 1
    s_add_u32 s41, s41, s{S_U}
    s_lshl_b32 s42, s{S_OCT}, 6
    s_add_u32 s41, s41, s42
    s_mul_i32 s41, s41, {16*1280}
    s_cmp_eq_u32 s{S_U}, 0
    s_cselect_b32 s78, s{S_QUAD}, s{S_GRP}
    s_cselect_b32 s79, s{S_J}, s{S_OCT}         ; member
    s_lshl_b32 s42, s78, 9
    s_lshl_b32 s44, s{S_U}, 15
    s_add_u32 s42, s42, s44
    s_add_u32 s42, s42, {WS_F}
    """)
    make_srd(a, S_WW, 18, "s41", 16 * 1280)
    make_srd(a, S_FL, 16, "s42", 512)
    a(f"""
    s_lshl_b32 s44, s79, 7
    v_mov_b32 v26, s44
    v_mov_b32 v27, 0
    ; poll offsets: lanes 0..2 -> members (m+1+lane)%4
    v_and_b32 v28, 3, v{L}
    v_min_u32 v28, 2, v28
    s_add_u32 s44, s79, 1
    v_add_u32 v28, s44, v28
    v_and_b32 v28, 3, v28
    v_lshlrev_b32 v28, 7, v28
    s_lshr_b32 s44, s78, 2
    s_lshl_b32 s44, s44, 4
    v_mov_b32 v29, s44
    v_lshlrev_b32 v30, 4, v{L}
    s_movk_i32 s49, 3277
    """)
    for i in range(5):
        a(f"""
        v_add_u32 v1, {64*i}, v{L}          ; n
        v_mul_u32_u24 v2, s49, v1
        v_lshrrev_b32 v2, 16, v2            ; row
        v_mul_u32_u24 v3, 20, v2
        v_sub_u32 v3, v1, v3                ; g
        v_mul_u32_u24 v2, 1280, v2
        v_lshl_add_u32 v{GO+i}, v3, 4, v2
        """)
        if 0 < i < 4:
            a(f"v_subrev_u32 v{GO+i}, {1024*i}, v{GO+i}")
    a(f"s_mul_i32 s95, s{S_U}, 10240")
    def issueWO(c, win=0):
        m, cc = divmod(c, 4)
        a(f"""
        s_add_u32 s49, s{S_J}, {m}
        s_and_b32 s49, s49, 3
        s_lshl_b32 s49, s49, 1
        s_add_u32 s49, s49, s{S_U}
        s_mul_i32 s49, s49, {128*1280}
        """)
        for grp in range(2):
            a(f"s_add_u32 m0, s95, {wo_slot(c)+grp*5120}")
            a(f"s_add_u32 s57, s49, {(cc*32+grp*16)*1280}")
            for i in range(4):
                a(f"buffer_load_dwordx4 v{GO+i}, {sr(S_WO,4)}, s57 offen offset:{i*1024} lds")
            a(f"s_add_u32 m0, s95, {wo_slot(c)+grp*5120+4096}")
            a("s_nop 0")
            a(f"buffer_load_dwordx4 v{GO+4}, {sr(S_WO,4)}, s57 offen lds")
        vm.issue(("WO", c), 10)
    nwarm = [0]
    def warm(n, win=0):
        for i in range(nwarm[0], min(20, nwarm[0] + n)):
            if i % 4 == 0 or i == nwarm[0]: a(f"s_mov_b32 s57, {(i//4)*4096}")
            window(win)
            a(f"buffer_load_dwordx4 v[32:35], v30, {sr(S_WW,4)}, s57 offen offset:{(i%4)*1024}")
            vm.issue("warm")
        nwarm[0] = min(20, nwarm[0] + n)
    WIN = opt.get("win", 11)
    tiles = seq_tiles()
    nxt = [0]
    def issue_stream(limit_ev, count=None, win=0):
        n = 0
        while nxt[0] < len(tiles) * 8 and (count is None or n < count):
            ti, i = divmod(nxt[0], 8)
            if ev_order(avail[tiles[ti]]) > ev_order(limit_ev): break
            k = 8 - i if count is None else min(8 - i, count - n)
            issueKV(tiles[ti], win, i, i + k)
            nxt[0] += k; n += k
    classes = opt.get("classes", [{"bursts":{"2":16,"6":16,"10":8},"warms":{"10":8,"14":12}},{"bursts":{"4":16,"8":16,"12":8},"warms":{"12":8,"16":12}}])
    tailb = opt.get("tailb", {"18": 10, "19": 4})
    defer = opt.get("defer", True)
    issueW(2); issueW(3); issueX(1); issueW(4)
    ncl = len(classes)
    if ncl > 1:
        a(f"s_lshr_b32 s44, s2, {opt.get('class_shift', 3)}")
        if ncl == 3:
            a("""
            s_and_b32 s44, s44, 31
            s_mul_i32 s49, s44, 43
            s_lshr_b32 s49, s49, 7
            s_mul_i32 s49, s49, 3
            s_sub_u32 s44, s44, s49
            """)
        else:
            a(f"s_and_b32 s44, s44, {ncl-1}")
        for ci in range(1, ncl):
            a(f"s_cmp_eq_u32 s44, {ci}")
            a(f"s_cbranch_scc1 K_cls{ci}")
    q0 = list(vm.q); final = None
    for ci, cl in enumerate(classes):
        if ci: a(f"K_cls{ci}:")
        vm.q = list(q0); nxt[0] = 0; nwarm[0] = 0
        bursts = dict(cl.get("bursts", {})); bursts.update(tailb)
        warms = cl.get("warms", {})
        wnext = 5; xnext = 2
        hold = -1
        for st in range(20):
            vm.wait(("X", st // 2)); vm.wait(("W", 2 * st)); vm.wait(("W", 2 * st + 1))
            a("s_barrier")
            wmax = min(39, 2 * st + 6); xmax = min(9, st // 2 + 1)
            budget = 0 if st == hold else (opt.get("catch", 3) if st < 16 else 9)
            need_w = min(39, 2 * st + 3); need_x = min(9, (st + 1) // 2)
            while budget > 0 or wnext <= need_w or xnext <= need_x:
                if xnext <= xmax and (wnext > wmax or 4 * xnext <= wnext):
                    issueX(xnext); xnext += 1
                elif wnext <= wmax:
                    issueW(wnext); wnext += 1; budget -= 1
                else:
                    break
            nb = bursts.get(str(st), 0); nw = warms.get(str(st), 0)
            if nb: issue_stream(("q", st), nb)
            if nw: warm(nw)
            if (nb or nw) and defer and st < 16: hold = st + 1
        assert wnext == 40 and xnext == 10
        state = (list(vm.q), nxt[0], nwarm[0])
        assert final is None or final == state, (final, state)
        final = state
        if ci < ncl - 1: a("s_branch K_clsj")
    if ncl > 1: a("K_clsj:")
    vm.wait(("K", 0))
    a("s_barrier                    ; QE")
    wo_next = [0]
    def issue_wo_avail(ev, maxn):
        n = 0
        while wo_next[0] < 8 and n < maxn and ev_order(wop[wo_next[0]][1]) <= ev_order(ev):
            issueWO(wo_next[0]); wo_next[0] += 1; n += 1
    def need_idx(t):
        return min(len(tiles), 2 * t + 3) * 8
    ev = ("qe",)
    RATE = opt.get("rate", 10)
    for t in range(17):
        tgt = min(len(tiles) * 8, max(need_idx(t) + WIN, nxt[0] + (opt.get("rate0", 8) if t == 0 else RATE)))
        if tgt > nxt[0]: issue_stream(ev, tgt - nxt[0], WIN)
        if opt.get("verbose"): print("B", t, "issued", nxt[0], "need", need_idx(t))
        if t == opt.get("warm_at", 99): warm(20, WIN)
        if t == 12:
            a(f"global_load_dword v31, v29, s[{S_DBG}:{S_DBG+1}] sc1")
            vm.issue("init")
        if t == 14:
            li = a.label("K_init")
            vm.wait("init")
            a(f"""
            {li}:
            v_readfirstlane_b32 s94, v31
            s_cmp_lg_u32 s94, 0
            s_cbranch_scc1 {li}_done
            s_sleep 4
            global_load_dword v31, v29, s[{S_DBG}:{S_DBG+1}] sc1
            s_waitcnt vmcnt(0)
            s_branch {li}
            {li}_done:
            """)
        if t >= opt.get("wo_from", 10): issue_wo_avail(ev, min(1 if t < 15 else 8, opt.get("wo_pre", 8) - wo_next[0]))
        if t < 16:
            if t < 15: vm.wait(("K", t + 1))
            vm.wait(("V", t))
        else:
            for c_ in range(4):
                assert c_ < wo_next[0]
                vm.wait(("WO", c_))
        a(f"s_barrier                  ; B_{t}")
        ev = ("b", t)
    assert nxt[0] == len(tiles) * 8 and nwarm[0] == 20
    if opt.get("notail"): a("s_endpgm")
    def sigpoll(u):
        lp = a.label("K_poll")
        a(f"""
        s_cmp_eq_u32 s{S_U}, {u}
        s_cbranch_scc0 {lp}_done
        v_mov_b32 v27, s94
        s_mov_b64 exec, 1
        buffer_store_dword v27, v26, {sr(S_FL,4)}, 0 offen sc1
        s_mov_b64 exec, 7
        {lp}:
        buffer_load_dword v31, v28, {sr(S_FL,4)}, 0 offen sc1
        s_waitcnt vmcnt(0)
        v_cmp_eq_u32 vcc, s94, v31
        s_and_b32 s49, vcc_lo, 7
        s_cmp_eq_u32 s49, 7
        s_cbranch_scc1 {lp}_ok
        s_sleep 1
        s_branch {lp}
        {lp}_ok:
        s_mov_b64 exec, -1
        {lp}_done:
        """)
    issue_wo_avail(ev, opt.get("wo_pre", 8) - wo_next[0])
    a("s_barrier           ; SB")
    if opt.get("wo_mid", True): issue_wo_avail(ev, 8)
    sigpoll(0)
    issue_wo_avail(ev, 8)
    assert wo_next[0] == 8
    vm.wait(("WO", 4))
    a("s_barrier           ; RB")
    nfree = RB_AT // 10
    wn = 8
    while wn < 8 + nfree:
        issueWO(wn); wn += 1
    for ch in range(5, 16):
        vm.wait(("WO", ch))
        a(f"s_barrier                  ; OB_{ch}")
        k = 0
        while wn < 16 and wn <= ch + 6 and k < 2:
            issueWO(wn); wn += 1; k += 1
    a("s_barrier           ; X1")
    a("s_barrier           ; F0")
    sigpoll(1)
    a("s_barrier           ; F1")
    a("""
    K_end:
    s_endpgm
    """)
    ld_text = a.text()
    head, rest = att_text.split("    s_cbranch_scc1 K_loader\n")
    body = head + "    s_cbranch_scc0 K_att\n" + ld_text + "K_att:\n" + rest
    return dict(name=NAME + "_kernel", body=body, grid=256, block=512, lds=163840, vgpr=256, sgpr=102)

if __name__ == "__main__":
    out = sys.argv[1] if len(sys.argv) > 1 else "v6.s"
    opt = json.loads(sys.argv[2]) if len(sys.argv) > 2 else {}
    write_file(out, [kernel(opt)])
    if opt.get("stamp"):
        open(out, "a").write("; STAMPS " + json.dumps(STAMPS) + "\n")
```

```python
from asmlib import *
from gen import make_srd
N = NAME + "_kernel"
def touch(gran_log2, code=False, data=True):
    a = Asm()
    a(f"""
    s_cmp_ge_u32 s2, 256
    s_cbranch_scc1 T_end
    s_load_dwordx16 s[8:23], s[0:1], 0
    s_load_dwordx8 s[24:31], s[0:1], 64
    s_load_dwordx2 s[32:33], s[0:1], 96
    s_lshr_b32 s3, s2, 3
    v_lshlrev_b32 v1, 5, v0       ; tid*32
    v_add_u32 v1, s3, v1
    v_lshlrev_b32 v1, {gran_log2}, v1
    s_waitcnt lgkmcnt(0)
    """)
    if data:
        bufs = [(8, 983040), (10, 1 << 25), (12, 1 << 25), (14, 5242880), (16, 5242880), (18, 983040), (20, 1 << 25), (22, 1 << 25),
                (24, 5242880), (26, 5242880), (28, 1966080), (32, 44 << 20)]
        for i, (p, n) in enumerate(bufs):
            make_srd(a, 40, p, None, n)
            a(f"buffer_load_dword v{4+i}, v1, s[40:43], 0 offen nt")
    if code:
        a(f"""
        s_getpc_b64 s[44:45]
        T_pc:
        s_add_u32 s44, s44, {N}-T_pc
        s_addc_u32 s45, s45, 0
        s_and_b32 s45, s45, 0xffff
        s_mov_b32 s46, 65536
        s_mov_b32 s47, 0x20000
        v_lshlrev_b32 v2, 5, v0
        v_add_u32 v2, s3, v2
        v_lshlrev_b32 v2, 7, v2
        buffer_load_dword v20, v2, s[44:47], 0 offen
        """)
    a("""
    s_waitcnt vmcnt(0)
    T_end:
    s_endpgm
    """)
    return kernel_text("t_kernel", a.text(), 24, 64)
def mk(out, base, pre_text, pre_launch):
    s = open(base).read()
    line = "; @launch grid=(256,1,1) block=(512,1,1) lds=163840\n"
    l1 = f"; @launch kernel={N} grid=(256,1,1) block=(512,1,1) lds=163840\n"
    tgt = '.amdgcn_target "amdgcn-amd-amdhsa--gfx950"\n'
    s = s.replace(line, pre_launch + l1).replace(tgt, tgt + pre_text)
    open(out, "w").write(s)
if __name__ == "__main__":
    mk("t_p1.s", "v7.s", touch(16), "; @launch kernel=t_kernel grid=(256,1,1) block=(64,1,1) lds=0\n")
    mk("t_p2.s", "v7.s", touch(16, code=True, data=False), "; @launch kernel=t_kernel grid=(256,1,1) block=(64,1,1) lds=0\n")
    mk("t_p3.s", "v7.s", touch(12), "; @launch kernel=t_kernel grid=(256,1,1) block=(512,1,1) lds=0\n")
    k = open("mb_k5.s").read()
    body = k[k.index(".text"):]
    mk("t_p4.s", "v7.s", body, "; @launch kernel=kv_kernel grid=(256,1,1) block=(128,1,1) lds=106496\n")
    mk("t_p5.s", "v7.s", body, "; @launch kernel=kv_kernel grid=(256,1,1) block=(128,1,1) lds=106496\n" * 2)
```

```python
import sys, math, struct, json
from asmlib import *
from gen import f2u, QSCALE, THRESH, Cnt, vr, sr, mfma, make_srd, tr_lane_addr

WS_O = 0
WS_P = 16 << 20
WS_F = 40 << 20
WS_T = 64 << 20
INF = 10 ** 9

STAMPS = {"A": [], "B": []}
def stamp(a, opt, grp, name):
    if not opt.get("stamp"): return
    if name not in STAMPS[grp]: STAMPS[grp].append(name)
    a(f"""
    s_memrealtime s[92:93]
    s_waitcnt lgkmcnt(0)
    v_writelane_b32 v255, s92, {STAMPS[grp].index(name)}
    """)
def stamp_flush(a, opt):
    if not opt.get("stamp"): return
    a(f"""
    s_lshl_b32 s88, s2, 3
    s_add_u32 s88, s88, s{S_WAVE}
    s_lshl_b32 s88, s88, 8
    s_add_u32 s88, s88, {WS_T}
    """)
    make_srd(a, 84, 16, "s88", 256)
    a(f"""
    v_lshlrev_b32 v254, 2, v{V_LANE}
    buffer_store_dword v255, v254, s[84:87], 0 offen
    """)

S_X, S_W, S_K, S_V, S_O = 20, 24, 28, 32, 36
S_WAVE, S_OCT, S_U, S_QT, S_J = 40, 60, 61, 62, 63
S_WO, S_OQ, S_PP = 64, 68, 72
S_DBG = 76
S_FL, S_OUT, S_PG, S_WW = 8, 12, 96, 84
S_QUAD, S_GRP = 82, 83
S_OOFF = 100
S_BR, S_B = 4, 7
BLK = 8192
V_O, V_Q, V_SA, V_SB, V_CM, V_P, V_KF, V_VF = 0, 64, 96, 112, 128, 144, 152, 184
V_KA, V_VA, V_L, V_T = 216, 224, 228, 230
V_LANE = 250
WB, XB = 232, 236
VL16 = 243

G_QE = 20
def GS(t): return 21 + t
G_T0 = 53

class LDS:
    def __init__(self):
        self.busy = [-1] * 160
        self.owner = [None] * 160
    def free(self, lo, n, g):
        return all(self.busy[k] <= g for k in range(lo // 1024, (lo + n + 1023) // 1024))
    def take(self, lo, n, who):
        for k in range(lo // 1024, (lo + n + 1023) // 1024):
            self.busy[k] = INF; self.owner[k] = who
    def release(self, lo, n, g):
        for k in range(lo // 1024, (lo + n + 1023) // 1024):
            self.busy[k] = g
    def alloc(self, cands, n, g, who):
        for lo in cands:
            if self.free(lo, n, g):
                self.take(lo, n, who)
                return lo
        return None

def stream_tiles():
    s = [("A", "K", 0), ("A", "K", 1)]
    for t in range(14): s += [("A", "V", t), ("A", "K", t + 2)]
    s += [("A", "V", 14), ("B", "K", 0), ("A", "V", 15), ("B", "K", 1)]
    for t in range(14): s += [("B", "V", t), ("B", "K", t + 2)]
    s += [("B", "V", 14), ("B", "V", 15)]
    return s
def tile_use(tl):
    u, k, j = tl
    t = (max(j - 2, -1) if k == "K" else j) + (16 if u == "B" else 0)
    return GS(t)

class RG:
    def __init__(self, a, afr, nf, ahead):
        self.a = a; self.afr = afr; self.nf = nf; self.ahead = ahead
        self.c = Cnt(a, "lgkmcnt", 15)
        self.items = []; self.nread = 0; self.ndone = 0
    def read_upto(self, n):
        while self.nread < min(n, len(self.items)):
            it = self.items[self.nread]
            if not it["ok"](): break
            need = 2 + (1 if it.get("bread") else 0)
            if len(self.c.q) + need > 15: break
            d = self.afr + 4 * (self.nread % self.nf)
            if it.get("bread"):
                self.a(it["bread"]()); self.c.issue(self.nread)
            va, off, second = it["addr"]()
            self.a(f"ds_read_b64_tr_b16 {vr(d,2)}, v{va} offset:{off}")
            self.a(f"ds_read_b64_tr_b16 {vr(d+2,2)}, v{va} offset:{off+second}")
            self.c.issue(self.nread, 2)
            self.nread += 1
    def run(self, n):
        for _ in range(n):
            i = self.ndone
            self.read_upto(i + self.ahead)
            assert self.nread > i, "operand not readable"
            it = self.items[i]
            self.c.wait(i)
            mfma(self.a, it["acc"], self.afr + 4 * (i % self.nf), it["b"], None if it["first"] else it["acc"])
            self.ndone += 1
            self.read_upto(i + 1 + self.ahead)

def kernel(opt):
    opt.setdefault("mode", "mixed"); opt.setdefault("qb", 8); opt.setdefault("ql", 4); opt.setdefault("extra_until", 26)
    opt.setdefault("qh", 8); opt.setdefault("warmmap", {}); opt.setdefault("npf", 0); opt.setdefault("winy", 16)
    opt.setdefault("hb", [5, 7, 9, 11, 13, 15, 17, 19]); opt.setdefault("tpoll", 4); opt.setdefault("tchk", 5)
    ym = {str(t): 6 for t in range(16, 23)}; ym.update({str(t): 5 for t in range(23, 30)}); ym["-1"] = 10
    opt.setdefault("qhmap", ym); opt.setdefault("qlmap", {str(t): 3 for t in range(16, 28)})
    L = V_LANE
    ntkv = " nt"
    lds = LDS()
    tiles = stream_tiles()
    NPRE = opt.get("npre", 9)
    WPOOL = [b * BLK for b in range(14, 20)]
    LW0 = WPOOL[0]
    LX0, LXSZ, LXN = 5 * BLK, 12288, 3
    RINGS = {"K": [b * BLK for b in range(5)], "V": [b * BLK for b in range(10, 14)]}
    EXTRAS = {"K": [b * BLK for b in (5, 6)], "V": [b * BLK for b in (9, 8, 7)]}
    VBASE = 6 * BLK
    addr = {}
    landed = {}
    A = Asm(); B = Asm(); B.nlabel = 2000
    LQ = Asm(); LQ.nlabel = 4000
    LD = Asm(); LD.nlabel = 5000
    P = Asm()
    P(f"""
    s_cmp_ge_u32 s2, 256
    s_cbranch_scc1 K_end
    s_and_b32 s3, s2, 7
    s_lshr_b32 s{S_BR}, s3, 2      ; branch
    s_mul_i32 s5, s{S_BR}, 40
    s_load_dwordx8 s[8:15], s[0:1], s5      ; x, k, v, wq
    s_load_dwordx2 s[18:19], s[0:1], s5 offset:32   ; wo
    s_load_dwordx2 s[16:17], s[0:1], 96     ; ws
    s_load_dwordx2 s[76:77], s[0:1], 88     ; debug
    s_load_dwordx2 s[80:81], s[0:1], 80     ; out
    v_lshrrev_b32 v1, 6, v0
    v_and_b32 v{L}, 63, v0
    v_readfirstlane_b32 s{S_WAVE}, v1
    s_and_b32 s{S_OCT}, s3, 3
    s_lshr_b32 s6, s2, 3           ; idx 0..31
    s_and_b32 s{S_B}, s6, 7        ; b
    s_lshr_b32 s{S_J}, s6, 3       ; j 0..3
    s_lshr_b32 s{S_U}, s{S_WAVE}, 2
    s_and_b32 s{S_QT}, s{S_WAVE}, 3
    s_lshl_b32 s3, s{S_OCT}, 3
    s_lshl_b32 s6, s{S_J}, 1
    s_add_u32 s6, s6, s3           ; h0 = 8*oct + 2*j
    s_lshl_b32 s43, s{S_B}, 5
    s_add_u32 s43, s43, s6         ; b*32+h0
    s_lshl_b32 s44, s{S_BR}, 3
    s_add_u32 s44, s44, s{S_B}
    s_lshl_b32 s44, s44, 2         ; (br*8+b)*4
    s_add_u32 s{S_QUAD}, s44, s{S_OCT}
    s_add_u32 s{S_GRP}, s44, s{S_J}
    s_cmp_eq_u32 s{S_QT}, 3
    s_cbranch_scc0 K_att
    """)
    C = Asm(); C.nlabel = 7000
    C("K_att:")
    if opt.get("stamp"):
        stamp(C, opt, "A", "start"); STAMPS["B"].append("start")
    tr_lane_addr(C, WB, L, 1, 2, 8, 256, True)
    C(f"v_add_u32 v{WB}, {LW0}, v{WB}")
    for t in range(1, 4):
        C(f"v_xor_b32 v{WB+t}, {64*t}, v{WB}")
    C(f"""
    v_and_b32 v1, 31, v{L}              ; j
    v_lshrrev_b32 v2, 5, v{L}           ; h
    v_bfe_u32 v3, v1, 1, 3              ; (j/2)%8
    v_xor_b32 v2, v2, v3
    v_lshlrev_b32 v2, 4, v2
    v_lshl_add_u32 v2, v1, 7, v2
    s_lshl_b32 s49, s{S_QT}, 12         ; qt*32*128
    s_add_u32 s49, s49, {LX0}
    v_add_u32 v{XB}, s49, v2
    v_xor_b32 v{XB+1}, 32, v{XB}
    v_xor_b32 v{XB+2}, 64, v{XB}
    v_xor_b32 v{XB+3}, 96, v{XB}
    """)
    def kv_addr_setup(a):
        t0, t1, t2 = 244, 245, 246
        a(f"""
        v_and_b32 v{t0}, 31, v{L}              ; i
        v_lshrrev_b32 v{t1}, 5, v{L}           ; h
        v_and_b32 v{t2}, 15, v{t0}
        v_xor_b32 v{t1}, v{t1}, v{t2}
        v_lshlrev_b32 v{t1}, 4, v{t1}
        v_lshl_add_u32 v{V_KA}, v{t0}, 8, v{t1}
        """)
        for s in range(1, 8):
            a(f"v_xor_b32 v{V_KA+s}, {32*s}, v{V_KA}")
        tr_lane_addr(a, V_VA, L, t0, t1, 4, 256, True)
        a(f"v_add_u32 v{V_VA}, {VBASE}, v{V_VA}")
        for t in range(1, 4):
            a(f"v_xor_b32 v{V_VA+t}, {64*t}, v{V_VA}")
        a(f"v_mov_b32 v{V_L}, 0")
        a(f"v_mov_b32 v{V_L+1}, 0")
    kv_addr_setup(A)
    C(f"""
    v_lshlrev_b32 v{VL16}, 4, v{L}
    s_waitcnt lgkmcnt(0)
    s_lshl_b32 s44, s{S_BR}, 8
    s_add_u32 s44, s44, s43
    s_add_u32 s44, s44, s{S_U}
    s_mul_i32 s44, s44, 24576
    s_lshl_b32 s42, s{S_GRP}, 2
    s_mul_i32 s45, s42, 30720
    s_add_u32 s45, s45, {WS_P}
    s_mul_i32 s46, s{S_OCT}, 30720
    s_add_u32 s46, s46, s45
    """)
    make_srd(C, S_O, 16, "s44", 24576)
    make_srd(C, S_PG, 16, "s45", 4 * 30720)
    make_srd(C, S_PP, 16, "s46", 30720)
    make_srd(C, S_OUT, 80, None, 8 * 96 * 2560)
    C(f"""
    s_mul_i32 s41, s{S_B}, 96
    s_lshl_b32 s42, s{S_QT}, 5
    s_add_u32 s41, s41, s42
    s_lshl_b32 s42, s{S_OCT}, 3
    s_add_u32 s41, s41, s42
    s_mul_i32 s41, s41, 2560
    s_mul_i32 s42, s{S_BR}, 1280
    s_add_u32 s41, s41, s42
    s_mul_i32 s42, s{S_J}, 320
    s_add_u32 s41, s41, s42
    s_mul_i32 s42, s{S_U}, 160
    s_add_u32 s{S_OOFF}, s41, s42
    s_mov_b32 s53, {hex(f2u(QSCALE))}
    s_mov_b32 s54, {hex(f2u(2.0 ** opt.get("lim", 12)))}
    s_lshl_b32 s55, s{S_QT}, 13
    s_add_u32 s56, s55, 4096
    s_cmp_eq_u32 s{S_U}, 0
    s_cbranch_scc0 K_B
    """)
    B("K_B:")
    if opt.get("codepf", True):
        B(f"""
        s_cmp_eq_u32 s{S_QT}, 1
        s_cbranch_scc0 K_nopf
        s_getpc_b64 s[64:65]
        K_pc:
        s_sub_u32 s64, s64, K_pc-{NAME}_kernel
        s_subb_u32 s65, s65, 0
        s_and_b32 s65, s65, 0xffff
        s_mov_b32 s66, K_codeend-{NAME}_kernel
        s_mov_b32 s67, 0x20000
        s_lshr_b32 s44, s2, 3
        s_lshl_b32 s44, s44, 7
        v_lshlrev_b32 v244, 12, v{L}
        buffer_load_dword v245, v244, s[64:67], s44 offen
        K_nopf:
        """)
    B(f"""
    s_add_u32 s95, s{S_OCT}, s{S_J}
    s_add_u32 s95, s95, s{S_QT}
    s_lshr_b32 s78, s{S_QUAD}, 2
    s_lshl_b32 s42, s78, 11
    s_add_u32 s42, s42, {WS_F}
    """)
    make_srd(B, S_FL, 16, "s42", 2 * 32768 + 2048)
    B(f"""
    v_and_b32 v246, 15, v{L}
    v_lshlrev_b32 v246, 7, v246
    v_lshrrev_b32 v247, 4, v{L}
    v_min_u32 v247, 2, v247
    v_lshlrev_b32 v247, 15, v247
    v_add_u32 v246, v246, v247
    s_lshl_b32 s44, s78, 4
    v_mov_b32 v248, s44
    s_cmp_eq_u32 s95, 0
    s_cbranch_scc0 K_nz
    buffer_load_dword v247, v246, {sr(S_FL,4)}, 0 offen sc1
    K_nz:
    """)

    GW, GX, GK, GV, GO = 4, 8, 12, 16, 20
    a = LQ
    a(f"""
    s_add_u32 s45, s{S_J}, s{S_B}      ; rotation: ((j+b)%5)*2 pairs
    s_cmp_ge_u32 s45, 5
    s_cselect_b32 s46, 5, 0
    s_sub_u32 s45, s45, s46
    s_cmp_ge_u32 s45, 5
    s_cselect_b32 s46, 5, 0
    s_sub_u32 s45, s45, s46
    s_lshl_b32 s45, s45, 1
    v_lshrrev_b32 v1, 4, v{L}           ; l/16
    v_and_b32 v2, 15, v{L}
    ; X: instr i = 2m+Lx : rows 8i + l/8 ; c = (l%8) ^ (l/16) ^ 4Lx
    v_lshrrev_b32 v17, 3, v{L}          ; l/8
    v_and_b32 v3, 7, v{L}
    v_xor_b32 v3, v3, v1
    s_lshl_b32 s49, s{S_U}, 2
    v_xor_b32 v3, s49, v3
    v_lshlrev_b32 v3, 4, v3
    v_mul_u32_u24 v17, 1280, v17
    v_add_u32 v{GX}, v17, v3
    s_mul_i32 s49, s{S_U}, 10240
    v_add_u32 v{GX}, s49, v{GX}
    v_add_u32 v{GX+1}, {20480-2048}, v{GX}
    v_lshlrev_b32 v3, 2, v1
    v_xor_b32 v3, v2, v3                ; c = p ^ 4*(l/16)
    v_lshlrev_b32 v3, 4, v3
    v_lshl_add_u32 v{GV}, v1, 8, v3
    v_lshl_add_u32 v{GW}, v1, 13, v3    ; (l/16)*8192 + c*16
    v_add_u32 v{GW+1}, {1*(32768-1024)}, v{GW}
    v_add_u32 v{GW+2}, {2*(32768-1024)}, v{GW}
    v_add_u32 v{GW+3}, {3*(32768-1024)}, v{GW}
    s_lshl_b32 s50, s{S_U}, 10          ; Lx*1024
    s_lshl_b32 s48, s{S_U}, 12          ; Lx*4096
    s_lshl_b32 s47, s{S_U}, 17
    s_lshl_b32 s52, s45, 1
    s_mul_i32 s41, s{S_B}, 122880       ; x offset
    s_lshl_b32 s42, s6, 8
    s_sub_u32 s46, {640*8192}, s42
    s_lshl_b32 s43, s43, 17
    s_waitcnt lgkmcnt(0)
    """)
    make_srd(a, S_X, 8, "s41", 122880)
    make_srd(a, S_W, 14, "s42", "s46")

    def window(a, vm, w):
        if w and len(vm.q) > w - 1:
            a(f"s_waitcnt vmcnt({w-1})")
            vm.q = vm.q[len(vm.q) - (w - 1):]
    def wrap(a, base_sgpr, add, mod, dst):
        a(f"s_add_u32 {dst}, {base_sgpr}, {add}")
        a(f"s_cmp_ge_u32 {dst}, {mod}")
        a(f"s_cselect_b32 s58, {mod}, 0")
        a(f"s_sub_u32 {dst}, {dst}, s58")
    def issueX(a, vm, i):
        wrap(a, "s45", i, 10, "s59")
        a("s_lshl_b32 s59, s59, 7")
        for g in range(3):
            a(f"s_add_u32 m0, s50, {LX0+(i%LXN)*LXSZ+g*4096}")
            a(f"s_add_u32 s57, s59, {g*40960}")
            for m in range(2):
                window(a, vm, 60)
                a(f"buffer_load_dwordx4 v{GX+m}, {sr(S_X,4)}, s57 offen offset:{m*2048} lds")
                vm.issue(("X", i))
    def issueW_half(a, vm, item):
        _, u, st = item
        wrap(a, "s52", st, 20, "s59")
        a("s_lshl_b32 s59, s59, 18")
        a(f"s_add_u32 m0, s48, {addr[item]}")
        a(f"s_add_u32 s57, s59, s47")
        if u == "B": a("s_add_u32 s57, s57, 256")
        for j in range(4):
            window(a, vm, 60)
            a(f"buffer_load_dwordx4 v{GW+j}, {sr(S_W,4)}, s57 offen offset:{j*1024} lds")
            vm.issue(item)
    def kv_soff(a, tl, extra):
        u, k, j = tl
        a(f"s_add_u32 s57, s91, {(j + (1 if u == 'B' else 0))*8192}")
        a(f"s_and_b32 s57, s57, 0x1ffff")
        a(f"s_add_u32 s57, s57, {extra}")
    def issueKV_half(a, vm, tl):
        u, k, j = tl
        kv_soff(a, tl, "s48")
        if u == "B": a("s_add_u32 s57, s57, 131072")
        a(f"s_add_u32 m0, s48, {addr[tl]}")
        a("s_nop 0")
        for jj in range(4):
            window(a, vm, 60)
            a(f"buffer_load_dwordx4 v{GK+jj if k == 'K' else GV}, {sr(S_K if k == 'K' else S_V,4)}, s57 offen offset:{jj*1024}{ntkv} lds")
            vm.issue(tl)

    HB = opt.get("hb", [12, 14, 16])
    wseq = []; wuse = {}
    for st in range(20):
        wseq.append(("W", "A", st)); wuse[wseq[-1]] = st
        for k, hs in enumerate(HB):
            if hs == st:
                assert k < st
                wseq.append(("W", "B", k)); wuse[wseq[-1]] = st
    nB = len(HB); NPF = opt.get("npf", 3)
    for k in range(nB, nB + NPF):
        wseq.append(("W", "B", k)); wuse[wseq[-1]] = 20
    nH = len(wseq)
    wseq += [("W", "B", k) for k in range(nB + NPF, 20)]
    for i, it in enumerate(wseq[:nH]):
        addr[it] = WPOOL[i % len(WPOOL)]
        if it[1] == "B": landed[it] = wuse[it]
    def w_free_at(i):
        return -1 if i < len(WPOOL) else wuse[wseq[i - len(WPOOL)]] + 1
    for i in range(NPRE):
        addr[tiles[i]] = RINGS[tiles[i][1]][tiles[i][2]]
    vmq = Cnt(a, "vmcnt", 63)
    issueX(a, vmq, 0); issueW_half(a, vmq, wseq[0]); issueW_half(a, vmq, wseq[1])
    make_srd(a, S_K, 10, "s43", 262144)
    make_srd(a, S_V, 12, "s43", 262144)
    a(f"""
    s_lshl_b32 s91, s{S_B}, 14
    v_xor_b32 v3, v2, v1                ; p ^ (l/16)
    v_lshlrev_b32 v3, 4, v3
    v_lshl_add_u32 v{GK}, v1, 8, v3
    v_xor_b32 v{GK+1}, 64, v{GK}
    v_xor_b32 v{GK+2}, 128, v{GK}
    v_xor_b32 v{GK+3}, 192, v{GK}
    s_mul_i32 s41, s{S_OCT}, {1024*1280}
    s_mul_i32 s42, s{S_J}, 320
    s_add_u32 s41, s41, s42
    s_sub_u32 s42, {1024*1280}, s42
    """)
    make_srd(a, S_WO, 18, "s41", "s42")
    a(f"""
    s_lshr_b32 s41, s2, 3
    s_lshl_b32 s41, s41, 1
    s_add_u32 s41, s41, s{S_U}
    s_lshl_b32 s42, s{S_OCT}, 6
    s_add_u32 s41, s41, s42
    s_mul_i32 s41, s41, {16*1280}
    s_mul_i32 s44, s{S_QUAD}, {8*24576}
    s_mov_b32 s42, {WS_F}
    """)
    make_srd(a, S_WW, 18, "s41", 16 * 1280)
    make_srd(a, S_OQ, 16, "s44", 8 * 24576)
    make_srd(a, S_FL, 16, "s42", 3 * 32768)
    a(f"""
    v_lshlrev_b32 v30, 4, v{L}
    s_lshr_b32 s44, s{S_QUAD}, 2
    s_lshl_b32 s44, s44, 4
    v_mov_b32 v29, s44
    s_movk_i32 s49, 3277
    """)
    for i in range(5):
        a(f"""
        v_add_u32 v1, {64*i}, v{L}          ; n
        v_mul_u32_u24 v2, s49, v1
        v_lshrrev_b32 v2, 16, v2            ; row
        v_mul_u32_u24 v3, 20, v2
        v_sub_u32 v3, v1, v3                ; g
        v_mul_u32_u24 v2, 1280, v2
        v_lshl_add_u32 v{GO+i}, v3, 4, v2
        """)
        if 0 < i < 4:
            a(f"v_subrev_u32 v{GO+i}, {1024*i}, v{GO+i}")
    if opt.get("tlbpf", True):
        a(f"""
        s_cmp_eq_u32 s{S_U}, 0
        s_cbranch_scc0 K_tl1
        v_mov_b32 v33, 0
        s_mov_b64 exec, 1
        buffer_load_dword v32, v33, {sr(S_K,4)}, s91 offen nt
        buffer_load_dword v32, v33, {sr(S_V,4)}, s91 offen nt
        buffer_load_dword v32, v33, {sr(S_WO,4)}, 0 offen
        s_mov_b32 s44, {1023*1280}
        buffer_load_dword v32, v33, {sr(S_WO,4)}, s44 offen
        s_mov_b64 exec, -1
        s_branch K_tl2
        K_tl1:
        s_mul_i32 s41, s{S_GRP}, {4*30720}
        s_add_u32 s41, s41, {WS_P}
        s_mul_i32 s42, s{S_B}, {96*2560}
        v_mov_b32 v33, s41
        v_mov_b32 v34, s42
        v_mov_b32 v35, 0
        s_mov_b64 exec, 1
        buffer_load_dword v32, v35, {sr(S_OQ,4)}, 0 offen nt
        global_load_dword v32, v33, s[16:17] nt
        global_load_dword v32, v34, s[80:81] nt
        s_mov_b32 s44, {3*32768-128}
        buffer_load_dword v32, v35, {sr(S_FL,4)}, s44 offen nt
        s_mov_b64 exec, -1
        K_tl2:
        """)
        vmq.issue("tlb", 4)
    classes = opt.get("classes", [{"bursts":{"4":4,"9":4,"14":1},"warms":{"14":12,"17":8}},{"bursts":{"6":4,"11":4,"16":1},"warms":{"16":12,"18":8}}])
    ncl = len(classes)
    npro = opt.get("npro", 4)
    wi0 = 2
    issueX(a, vmq, 1)
    for i in range(2, npro):
        issueW_half(a, vmq, wseq[i]); wi0 += 1
    if ncl > 1:
        a(f"s_lshr_b32 s44, s2, 3")
        a(f"s_and_b32 s44, s44, {ncl-1}")
        for ci in range(1, ncl):
            a(f"s_cmp_eq_u32 s44, {ci}")
            a(f"s_cbranch_scc1 K_cls{ci}")
    q0 = list(vmq.q); final = None
    for ci, cl in enumerate(classes):
        if ci: a(f"K_cls{ci}:")
        vmq.q = list(q0)
        ntile = 0; nwarm = 0; wi = wi0; xi = 2; hold = -1
        for st in range(20):
            vmq.wait(("X", st // 2))
            for it in wseq[:nH]:
                if wuse[it] == st: vmq.wait(it)
            a("s_barrier")
            budget = 0 if st in range(hold, hold + opt.get("holdn", 2)) and hold >= 0 else opt.get("catch", 3)
            if st >= 17: budget = 9
            while True:
                xok = xi < 10 and 2 * (xi - LXN) + 2 <= st
                wok = wi < nH and w_free_at(wi) <= st
                need_x = xi < 10 and 2 * xi <= st + 1
                need_w = wi < nH and wuse[wseq[wi]] <= st + 1
                if not (budget > 0 or need_x or need_w): break
                if xok and (not wok or 2 * xi <= wuse[wseq[wi]]):
                    issueX(a, vmq, xi); xi += 1
                elif wok:
                    issueW_half(a, vmq, wseq[wi]); wi += 1; budget -= 1
                else:
                    assert not (need_x or need_w)
                    break
            nb = cl.get("bursts", {}).get(str(st), 0); nw = cl.get("warms", {}).get(str(st), 0)
            for _ in range(nb):
                issueKV_half(a, vmq, tiles[ntile]); ntile += 1
            for i in range(nwarm, nwarm + nw):
                if i % 4 == 0 or i == nwarm: a(f"s_mov_b32 s57, {(i//4)*4096}")
                window(a, vmq, 60)
                a(f"buffer_load_dwordx4 v[32:35], v30, {sr(S_WW,4)}, s57 offen offset:{(i%4)*1024}")
                vmq.issue("warm")
            nwarm += nw
            if nb or nw: hold = st + 1
        assert wi == nH and xi == 10 and ntile == NPRE and nwarm % 4 == 0, (wi, xi, ntile, nwarm)
        assert final is None or final == nwarm
        final = nwarm_h = nwarm
        for tl in tiles[:NPRE]: vmq.wait(tl)
        for it in wseq[:nH]: vmq.wait(it)
        vmq.q = []
        if ci < ncl - 1: a("s_branch K_clsj")
    if ncl > 1: a("K_clsj:")
    a(f"""
    s_mul_i32 s51, s{S_U}, 5120
    s_mul_i32 s90, s{S_U}, {16*1280}
    """)
    for tl in tiles[:NPRE]:
        lds.take(addr[tl], BLK, tl); landed[tl] = G_QE
    for i in range(nH - len(WPOOL), nH):
        if wuse[wseq[i]] == 20: lds.take(addr[wseq[i]], BLK, wseq[i])
        else: lds.release(addr[wseq[i]], BLK, wuse[wseq[i]] + 1)
    for i in range(7, 10):
        lds.release(LX0 + (i % LXN) * LXSZ, LXSZ, 2 * i + 2)

    QA = V_KF
    AFs, BFs = [96, 64], [128, 144]
    XC = [8 * i for i in range(12)] + [128, 136, 144, 216, 224]
    def xcap(k): return XC[k % len(XC)]
    for k in range(len(XC), 20):
        assert k - len(XC) < nB and HB[k - len(XC)] < k, "capture slot still in use"
    cur = [0]
    rgB = RG(B, 96, 8, 7)
    for k in range(20):
        it = ("W", "B", k)
        for ks in range(2):
            for t in range(4):
                rgB.items.append(dict(acc=QA + 16 * t, first=(k == 0 and ks == 0), b=xcap(k) + 4 * ks, chunk=it,
                    ok=(lambda it=it: landed.get(it, INF) <= cur[0]),
                    addr=(lambda it=it, ks=ks, t=t: (WB + t, addr[it] - LW0 + ks * 4096, 1024))))
    for grp, a in (("A", A), ("B", B)):
        for st in range(20):
            cur[0] = st
            if grp == "B" and st == 6:
                a(f"""
                s_cmp_eq_u32 s95, 0
                s_cbranch_scc0 K_na
                s_waitcnt vmcnt(0)
                s_mov_b32 s44, 0
                K_pick:
                s_add_u32 s44, s44, 1
                v_cmp_eq_u32 vcc, s44, v247
                s_cbranch_vccnz K_pick
                v_mov_b32 v249, s44
                s_mov_b64 exec, 1
                global_store_dword v248, v249, s[{S_DBG}:{S_DBG+1}] sc1
                s_mov_b64 exec, -1
                K_na:
                """)
            a("s_barrier")
            if st % opt.get("qstamp", 5) == 0 and (grp == "B" or opt.get("qstamp", 5) == 5): stamp(a, opt, grp, f"q{st}")
            xo_ = ((st // 2) % LXN) * LXSZ
            if grp == "B":
                if st in HB: rgB.run(8 * HB.count(st))
                assert not rgB.c.q
                for ks in range(2):
                    a(f"ds_read_b128 {vr(xcap(st)+4*ks,4)}, v{XB+2*(st%2)+ks} offset:{xo_}")
                a("s_waitcnt lgkmcnt(0)")
                continue
            reads = []
            AF, BF = AFs[st % 2], BFs[st % 2]
            for ks in range(2):
                wo_ = addr[("W", grp, st)] - LW0 + ks * 4096
                reads.append(f"ds_read_b128 {vr(BF+4*ks,4)}, v{XB+2*(st%2)+ks} offset:{xo_}")
                for t in range(4):
                    r = AF + 16 * ks + 4 * t
                    reads.append(f"ds_read_b64_tr_b16 {vr(r,2)}, v{WB+t} offset:{wo_}")
                    reads.append(f"ds_read_b64_tr_b16 {vr(r+2,2)}, v{WB+t} offset:{wo_+1024}")
            nrd = [0]
            def rd(n):
                for _ in range(n):
                    if reads:
                        a(reads.pop(0)); nrd[0] += 1
                        if nrd[0] == 14: a("s_waitcnt lgkmcnt(10)")
            if st > 0:
                AF, BF = AFs[(st - 1) % 2], BFs[(st - 1) % 2]
                for ks in range(2):
                    for t in range(4):
                        mfma(a, QA + 16 * t, AF + 16 * ks + 4 * t, BF + 4 * ks, None if (st == 1 and ks == 0) else QA + 16 * t)
                        rd(3)
            rd(99)
            a("s_waitcnt lgkmcnt(0)")

    T = V_T - 0
    TT = 244
    def maxtree(S, emit):
        t = TT
        emit(f"v_max3_f32 v{t}, v{S}, v{S+1}, v{S+2}")
        emit(f"v_max3_f32 v{t+1}, v{S+3}, v{S+4}, v{S+5}")
        emit(f"v_max3_f32 v{t+2}, v{S+6}, v{S+7}, v{S+8}")
        emit(f"v_max3_f32 v{t+3}, v{S+9}, v{S+10}, v{S+11}")
        emit(f"v_max3_f32 v{t+4}, v{S+12}, v{S+13}, v{S+14}")
        emit(f"v_max3_f32 v{t}, v{t}, v{t+1}, v{S+15}")
        emit(f"v_max3_f32 v{t+2}, v{t+2}, v{t+3}, v{t+4}")
        emit(f"v_max_f32 v{t}, v{t}, v{t+2}")
    def rebase(a, grp, k, ad):
        off = ad - (VBASE if k == "V" else 0)
        assert 0 <= off and off + BLK <= 65536
        return off
    rare = []
    def convert_q(a, mid=None):
        for t in range(4):
            for i in range(8):
                r = QA + 16 * t + 2 * i
                a(f"v_mul_f32 v{r}, s53, v{r}")
                a(f"v_mul_f32 v{r+1}, s53, v{r+1}")
                a(f"v_cvt_pk_bf16_f32 v{V_Q+8*t+i}, v{r}, v{r+1}")
                if mid: mid(t, i)
    PB_ = [V_P, 232]; A0, A1 = 230, 231; ET = [244 + i for i in range(6)]
    def soft_ops(S, P):
        ops = []
        e = lambda i: ET[i % 6]
        def ex(i): ops.append(f"v_exp_f32 v{e(i)}, v{S+i}")
        def post(i):
            if i == 1:
                ops.append(f"v_add_f32 v{A0}, v{e(0)}, v{e(1)}")
            elif i == 3:
                ops.append(f"v_add_f32 v{A1}, v{e(2)}, v{e(3)}")
            else:
                ops.append(f"v_add_f32 v{A0}, v{A0}, v{e(i-1)}")
                ops.append(f"v_add_f32 v{A1}, v{A1}, v{e(i)}")
            ops.append(f"v_cvt_pk_bf16_f32 v{P+i//2}, v{e(i-1)}, v{e(i)}")
        ex(0); ex(1); ex(2)
        pend = []
        for i in range(3, 16):
            ex(i)
            if i % 2 == 0: post(i - 1 - 0) if False else None
            if i % 2 == 1: post(i - 2)
        post(15)
        ops.append(f"v_add_f32 v{A0}, v{A0}, v{A1}")
        return spread(ops)
    def spread(ops):
        out = []; i = 0
        while i < len(ops):
            if i >= 3 and ops[i].startswith("v_exp") and i + 1 < len(ops) and ops[i + 1].startswith("v_exp") and i + 2 < len(ops) \
               and not ops[i + 2].startswith("v_exp"):
                da = ops[i].split()[1].rstrip(","); db = ops[i + 1].split()[1].rstrip(",")
                srcs = [t.rstrip(",") for t in ops[i + 2].split()[2:]]
                if da not in srcs and db not in srcs:
                    out += [ops[i], ops[i + 2], ops[i + 1]]; i += 3; continue
            out.append(ops[i]); i += 1
        for k in range(len(out) - 1):
            if out[k].startswith("v_exp") and not out[k + 1].startswith("v_exp"):
                d = out[k].split()[1].rstrip(",")
                if d in [t.rstrip(",") for t in out[k + 1].split()[2:]]:
                    out.insert(k + 1, "s_nop 0")
        return out
    NA = opt.get("na", 18)
    def first_max(a, SP):
        maxtree(SP, a)
        a(f"""
        v_mov_b32 v{TT+1}, v{TT}
        s_nop 1
        v_permlane32_swap_b32 v{TT}, v{TT+1}
        v_max_f32 v{TT}, v{TT}, v{TT+1}
        """)
        for i in range(16):
            a(f"v_sub_f32 v{V_SA+i}, v{SP+i}, v{TT}")
            a(f"v_sub_f32 v{V_CM+i}, 0, v{TT}")
        for op in soft_ops(V_SA, PB_[0])[:NA]: a(op)
    def att_step(a, grp, t_, kreg, vreg):
        Scur, Snxt = (V_SA, V_SB) if t_ % 2 == 0 else (V_SB, V_SA)
        Pc, Pn = PB_[t_ % 2], PB_[(t_ + 1) % 2]
        do_qk = t_ < 15
        c = Cnt(a, "lgkmcnt", 15)
        fill = soft_ops(Scur, Pc)[NA:]
        def rdV(i):
            u, t = divmod(i, 4)
            r = V_VF + 4 * i
            a(f"ds_read_b64_tr_b16 {vr(r,2)}, v{V_VA+t} offset:{vreg+u*4096}")
            a(f"ds_read_b64_tr_b16 {vr(r+2,2)}, v{V_VA+t} offset:{vreg+u*4096+2048}")
            c.issue(("V", i), 2)
        def emit(f, n):
            for _ in range(n):
                if f: a(f.pop(0))
        per = -(-len(fill) // 8)
        for s in range(8):
            if do_qk: mfma(a, Snxt, V_KF + 4 * s, V_Q + 4 * s, V_CM if s == 0 else Snxt)
            if s < 7: rdV(s)
            emit(fill, per)
        assert not fill
        lr = a.label("K_rare"); lb = a.label("K_back")
        a(f"v_cmp_nge_f32 vcc, s54, v{A0}")
        c.wait(("V", 3))
        a(f"s_cbranch_vccnz {lr}")
        a(f"{lb}:")
        rare.append((lr, lb, Scur, Snxt if do_qk else None, Pc, t_ == 0))
        nxt = soft_ops(Snxt, Pn)[:NA] if do_qk else []
        pern = -(-len(nxt) // 6)
        kn = 0
        for i in range(8):
            u, t = divmod(i, 4)
            if i == 4: c.wait(("V", 7))
            mfma(a, V_O + 16 * t, V_VF + 4 * i, Pc + 4 * u, None if (t_ == 0 and u == 0) else V_O + 16 * t)
            if i == 0:
                rdV(7)
                a(f"v_add_f32 v{V_L}, v{V_L}, v{A0}")
            if t_ < 14 and i >= 1:
                for _ in range(2 if i < 3 else 1):
                    if kn < 8:
                        a(f"ds_read_b128 {vr(V_KF+4*kn,4)}, v{V_KA+kn} offset:{kreg}")
                        c.issue(("K", kn)); kn += 1
            if i == 1 and do_qk and t_ >= 14: a("s_nop 3")
            if i >= 2: emit(nxt, pern)
        assert not nxt and (kn == 8 or t_ >= 14)
        if t_ < 14: a("s_waitcnt lgkmcnt(0)")
    def epilogue(a, lds_addr=None, f0=0, f1=8):
        if f0 == 0: a(f"""
        s_nop 0
        s_nop 0
        v_mov_b32 v{V_L+1}, v{V_L}
        s_nop 1
        v_permlane32_swap_b32 v{V_L}, v{V_L+1}
        v_add_f32 v{V_L}, v{V_L}, v{V_L+1}
        v_rcp_f32 v{V_L}, v{V_L}
        s_nop 3
        """)
        for f in range(f0, f1):
            t, u = divmod(f, 2)
            b = V_O + 16 * t + 8 * u
            for i in range(8):
                a(f"v_mul_f32 v{b+i}, v{b+i}, v{V_L}")
            d = V_KF + 4 * f
            for i in range(4):
                a(f"v_cvt_pk_bf16_f32 v{d+i}, v{b+2*i}, v{b+2*i+1}")
            so = "s55" if f < 4 else "s56"
            if not (opt.get("noost") and not lds_addr):
                a(f"buffer_store_dwordx4 {vr(d,4)}, v{VL16}, {sr(S_O,4)}, {so} offen offset:{(f%4)*1024}{opt.get('ost', ' sc1')}")
            if lds_addr:
                va, off = lds_addr(f)
                a(f"ds_write_b128 v{va}, {vr(d,4)} offset:{off}")

    ACC, VA0, VB0 = 0, 232, 236
    BR = [112 + 4 * i for i in range(4)]
    rgA = RG(A, 80, 8, opt.get("ahead", 6))
    for c in range(32):
        for ks in range(2):
            kk = 2 * c + ks
            for nt in range(5):
                d = dict(acc=ACC + 16 * nt, first=(kk == 0), chunk=c,
                         addr=(lambda c=c, ks=ks, nt=nt: (VA0 + (addr[("WO", c)] + ks * 5120 + nt * 64) // 61440,
                                                          (addr[("WO", c)] + ks * 5120 + nt * 64) % 61440, 1280)))
                if c < 4:
                    d["b"] = V_KF + 4 * kk
                    d["ok"] = (lambda c=c: landed.get(("WO", c), INF) <= cur[0])
                else:
                    d["b"] = BR[kk % 4]
                    d["ok"] = (lambda c=c: landed.get(("WO", c), INF) <= cur[0] and landed.get(("O", c), INF) <= cur[0])
                    if nt == 0:
                        d["bread"] = (lambda c=c, ks=ks, kk=kk: f"ds_read_b128 {vr(BR[kk%4],4)}, v{VB0+(addr[('O',c)]+ks*1024)//61440} offset:{(addr[('O',c)]+ks*1024)%61440}")
                rgA.items.append(d)
    def chunks_ready_A():
        n = rgA.ndone // 10
        k = 0
        while n + k < 32 and rgA.items[(n + k) * 10]["ok"](): k += 1
        return k
    def run_A(n, g):
        n0 = rgA.ndone // 10
        rgA.run(n)
        for c in range(n0, rgA.ndone // 10):
            lds.release(addr[("WO", c)], 10240, g + 1)
            if c >= 4: lds.release(addr[("O", c)], 6144, g + 1)

    vm = Cnt(LD, "vmcnt", 63)
    def head_off(a, c, scale, dst):
        m, u = (c // 4) % 4, c // 16
        a(f"""
        s_add_u32 {dst}, s{S_J}, {m}
        s_and_b32 {dst}, {dst}, 3
        s_lshl_b32 {dst}, {dst}, 1
        s_add_u32 {dst}, {dst}, {u}
        s_mul_i32 {dst}, {dst}, {scale}
        """)
    def item_atoms(it):
        kind = it[0]; atoms = []
        if kind in ("A", "B"):
            u, k, j = it
            def setup(a):
                kv_soff(a, it, "s48")
                if u == "B": a("s_add_u32 s57, s57, 131072")
            gs = [f"s_add_u32 m0, s48, {addr[it]}", "s_nop 0"]
            for jj in range(4):
                atoms.append((gs, f"buffer_load_dwordx4 v{GK+jj if k == 'K' else GV}, {sr(S_K if k == 'K' else S_V,4)}, s57 offen offset:{jj*1024}{ntkv} lds"))
        elif kind == "W":
            def setup(a):
                wrap(a, "s52", it[2], 20, "s49")
                a("s_lshl_b32 s49, s49, 18")
                a("s_add_u32 s49, s49, s47")
            gs = [f"s_add_u32 m0, s48, {addr[it]}", f"s_add_u32 s57, s49, 256"]
            for j in range(4):
                atoms.append((gs, f"buffer_load_dwordx4 v{GW+j}, {sr(S_W,4)}, s57 offen offset:{j*1024} lds"))
        elif kind == "WO":
            c = it[1]
            def setup(a):
                head_off(a, c, 128 * 1280, "s49")
                a("s_add_u32 s49, s49, s90")
            so = f"s_add_u32 s57, s49, {(c%4)*32*1280}"
            gs = [f"s_add_u32 m0, s51, {addr[it]}", so]
            for i in range(4):
                atoms.append((gs, f"buffer_load_dwordx4 v{GO+i}, {sr(S_WO,4)}, s57 offen offset:{i*1024} lds"))
            atoms.append(([f"s_add_u32 m0, s51, {addr[it]+4096}", so], f"buffer_load_dwordx4 v{GO+4}, {sr(S_WO,4)}, s57 offen lds"))
        elif kind == "O":
            c = it[1]
            def setup(a):
                head_off(a, c, 24576, "s49")
                a("s_add_u32 s49, s49, s50")
            for qt in range(3):
                gs = [f"s_add_u32 m0, s50, {addr[it]+qt*2048}", f"s_add_u32 s57, s49, {qt*8192+(c%4)*2048}"]
                atoms.append((gs, f"buffer_load_dwordx4 v30, {sr(S_OQ,4)}, s57 offen{opt.get('old', ' sc1')} lds"))
        else:
            def setup(a): pass
            gs = [f"s_mov_b32 s57, {it[1]*4096}"]
            for i in range(4):
                atoms.append((gs, f"buffer_load_dwordx4 v[32:35], v30, {sr(S_WW,4)}, s57 offen offset:{i*1024}"))
        return setup, atoms
    issued = []
    class Q:
        def __init__(self, pick): self.pick = pick; self.cur = None; self.n = 0
        def issue(self, g, quota, win=60, whole=False):
            n = 0
            while n < quota:
                fresh = False
                if not self.cur:
                    it = self.pick(g)
                    if it is None: break
                    self.cur = [it, *item_atoms(it)]
                it, setup, atoms = self.cur
                setup(LD); last = None
                while atoms and (n < quota or whole):
                    gs, line = atoms.pop(0)
                    if gs is not last:
                        for l in gs: LD(l)
                        last = gs
                    window(LD, vm, win)
                    LD(line); vm.issue(it); n += 1; self.n += 1
                if not atoms:
                    issued.append(it); self.cur = None
            return n
    nt_i = [NPRE]
    def pick_tile(g):
        if nt_i[0] >= len(tiles): return None
        tl = tiles[nt_i[0]]
        cands = RINGS[tl[1]] + (EXTRAS[tl[1]] if tile_use(tl) < GS(opt.get("extra_until", 15)) else [])
        ad = lds.alloc(cands, BLK, g, tl)
        if ad is None: return None
        addr[tl] = ad; nt_i[0] += 1
        return tl
    WOY = [LW0 + i * 10240 for i in range(4)] + [LX0]
    OY = [LW0 + 40960] + [LX0 + 10240 + i * 6144 for i in range(5)]
    OT = [i * 6144 for i in range(4)]
    WOT = [24576] + [10 * BLK + i * 10240 for i in range(3)]
    OT2 = [24576 + 10240]
    def cands_for(it, g):
        if it[0] == "W": return WPOOL, BLK
        late = nt_i[0] >= len(tiles)
        xfree = late or tile_use(tiles[nt_i[0]]) >= GS(opt.get("extra_until", 15))
        if it[0] == "WO": return (WOY if xfree else WOY[:4]) + (WOT if late else []), 10240
        return OY + (OT2 if late else []) + (OT if g >= G_T0 else []), 6144
    wB = list(wseq[nH:]); woq = [("WO", c) for c in range(32)]; oq = [("O", c) for c in list(range(4, 16)) + list(range(20, 32))]
    o_ok = [4]; wo_ok = [True]
    def pick_l(g):
        if wB: cand = [wB]
        else:
            o_c = oq[0][1] if (oq and oq[0][1] < o_ok[0]) else None
            w_c = woq[0][1] if (woq and wo_ok[0]) else None
            cand = []
            if o_c is not None and (w_c is None or o_c < w_c): cand = [oq] + ([woq] if w_c is not None else [])
            elif w_c is not None: cand = [woq] + ([oq] if o_c is not None else [])
        for q in cand:
            it = q[0]
            cs, n = cands_for(it, g)
            ad = lds.alloc(cs, n, g, it)
            if ad is not None:
                addr[it] = ad; q.pop(0)
                return it
        return None
    warmq = [("warm", i) for i in range(nwarm_h // 4, 5)]
    qH = Q(pick_tile); qL = Q(pick_l); qW = Q(lambda g: warmq.pop(0) if warmq else None)
    qH.n = NPRE * 4
    def flag_regs(fset, grp_sgpr, mem_sgpr):
        LD(f"""
        s_lshl_b32 s44, s{grp_sgpr}, 9
        s_add_u32 s79, s44, {fset*32768}
        s_lshl_b32 s44, s{mem_sgpr}, 7
        v_mov_b32 v26, s44
        v_and_b32 v28, 3, v{L}
        v_min_u32 v28, 2, v28
        s_add_u32 s44, s{mem_sgpr}, 1
        v_add_u32 v28, s44, v28
        v_and_b32 v28, 3, v28
        v_lshlrev_b32 v28, 7, v28
        v_mov_b32 v27, s94
        """)
    def signal():
        lp = LD.label("K_sig")
        LD(f"""
        s_cmp_eq_u32 s{S_U}, 1
        s_cbranch_scc0 {lp}
        s_mov_b64 exec, 1
        buffer_store_dword v27, v26, {sr(S_FL,4)}, s79 offen sc1
        s_mov_b64 exec, -1
        {lp}:
        """)
    def poll_issue():
        LD(f"buffer_load_dword v31, v28, {sr(S_FL,4)}, s79 offen sc1"); vm.issue("poll")
    def poll_check():
        lp = LD.label("K_poll")
        vm.wait("poll")
        LD(f"""
        {lp}:
        v_cmp_eq_u32 vcc, s94, v31
        s_and_b32 s49, vcc_lo, 7
        s_cmp_eq_u32 s49, 7
        s_cbranch_scc1 {lp}_ok
        s_sleep 1
        buffer_load_dword v31, v28, {sr(S_FL,4)}, s79 offen sc1
        s_waitcnt vmcnt(0)
        s_branch {lp}
        {lp}_ok:
        """)
    def mark_landed(g):
        for it in issued:
            if it not in landed and it not in vm.q: landed[it] = g

    SBA = opt.get("sba", 22); POLLA = opt.get("polla", 26); CHKA = opt.get("chka", 28)
    MODE = opt.get("mode", "burst"); PAR = opt.get("par", 1)
    EP = opt.get("ep", [0, 3, 6, 8]); NEP = len(EP) - 1
    b_state = ["gemm"]
    log = []; hist = []
    def need_atoms(g):
        return sum(4 for tl in tiles if tile_use(tl) <= g)
    def per_t(name, t, dflt):
        return opt.get(name, {}).get(str(t), dflt)
    for g in range(G_QE, G_T0):
        cur[0] = g
        t = g - 21
        ua, ta = ("A", t) if t < 16 else ("B", t - 16)
        att = A if ua == "A" else B
        kreg = vreg = None
        if t >= 0:
            if ta < 14: kreg = rebase(att, ua, "K", addr[(ua, "K", ta + 2)])
            vreg = rebase(att, ua, "V", addr[(ua, "V", ta)])
        if t == 15: kb0 = rebase(B, "B", "K", addr[("B", "K", 0)])
        if t == SBA: A("s_waitcnt vmcnt(0)")
        for a in (A, B, LD):
            a(f"s_barrier          ; G{g}")
        for tl in tiles:
            if tile_use(tl) == g:
                assert landed.get(tl, INF) <= g, tl
                lds.release(addr[tl], BLK, g + 1)
        if t < 0 or t % opt.get("sstamp", 4) == 0:
            if t >= 16 or opt.get("sstamp", 4) == 4: stamp(A, opt, "A", f"s{t}")
            if t < 17 or opt.get("sstamp", 4) == 4: stamp(B, opt, "B", f"s{t}")
        if opt.get("prio", True):
            if t == -1: A("s_setprio 2")
            if t == 16: A("s_setprio 0")
            if t == 15: B("s_setprio 2")
        if t == -1:
            AF, BF = AFs[1], BFs[1]
            KP = 96; SP = V_CM
            c = Cnt(A, "lgkmcnt", 15)
            for s in range(8):
                A(f"ds_read_b128 {vr(KP+4*s,4)}, v{V_KA+s} offset:{addr[('A','K',0)]}")
                c.issue(("K", s))
            for tt in range(4):
                for ks in range(2):
                    mfma(A, QA + 16 * tt, AF + 16 * ks + 4 * tt, BF + 4 * ks, QA + 16 * tt)
            A("s_nop 5")
            def mid(tt, i):
                if tt > 0 and i in (1, 5):
                    s = 2 * (tt - 1) + (i // 4)
                    c.wait(("K", s))
                    mfma(A, SP, KP + 4 * s, V_Q + 4 * s, None if s == 0 else SP)
            convert_q(A, mid)
            A("s_nop 1")
            for s in (6, 7):
                c.wait(("K", s))
                mfma(A, SP, KP + 4 * s, V_Q + 4 * s, SP)
            for s in range(8):
                A(f"ds_read_b128 {vr(V_KF+4*s,4)}, v{V_KA+s} offset:{addr[('A','K',1)]}")
            A("s_nop 3")
            first_max(A, SP)
            A("s_waitcnt lgkmcnt(0)")
        elif t < 16:
            att_step(A, "A", t, kreg, vreg)
        elif t < 16 + NEP - 1:
            if t == 16: A("s_nop 4")
            epilogue(A, None, EP[t - 16], EP[t - 15])
        elif t == 16 + NEP - 1:
            if t == 16: A("s_nop 4")
            epilogue(A, None, EP[t - 16], EP[t - 15])
            tr_lane_addr(A, VA0, L, 244, 245, 8, 320, False)
            A(f"""
            v_add_u32 v{VA0+1}, 61440, v{VA0}
            v_add_u32 v{VA0+2}, 122880, v{VA0}
            s_lshl_b32 s49, s{S_QT}, 11
            v_add_u32 v{VB0}, s49, v{VL16}
            v_add_u32 v{VB0+1}, 61440, v{VB0}
            v_add_u32 v{VB0+2}, 122880, v{VB0}
            """)
        else:
            avail = chunks_ready_A() * 10 - rgA.ndone % 10
            n = max(0, min(avail, per_t("qamap", t, opt.get("qa", 10)), 160 - rgA.ndone))
            run_A(n, g)
        if t < 15:
            if b_state[0] == "gemm":
                k = 0; n0 = rgB.ndone // 8
                while n0 + k < 20 and rgB.items[(n0 + k) * 8]["ok"](): k += 1
                n = max(0, min(8 * k - rgB.ndone % 8, per_t("qbmap", t, opt.get("qb", 10))))
                rgB.run(n)
                for cc in range(n0, rgB.ndone // 8): lds.release(addr[("W", "B", cc)], BLK, g + 1)
                if rgB.ndone == len(rgB.items): b_state[0] = "conv"
            elif b_state[0] == "conv":
                kv_addr_setup(B)
                convert_q(B)
                b_state[0] = "ready"
                stamp(B, opt, "B", "qdone")
        elif t == 15:
            assert b_state[0] == "ready", "Q(B) not finished in time"
            KP = 96; SP = V_CM
            c = Cnt(B, "lgkmcnt", 15)
            for s in range(8):
                B(f"ds_read_b128 {vr(KP+4*s,4)}, v{V_KA+s} offset:{kb0}")
                c.issue(("K", s))
            for s in range(8):
                c.wait(("K", s))
                mfma(B, SP, KP + 4 * s, V_Q + 4 * s, None if s == 0 else SP)
            kb1 = rebase(B, "B", "K", addr[("B", "K", 1)])
            for s in range(8):
                B(f"ds_read_b128 {vr(V_KF+4*s,4)}, v{V_KA+s} offset:{kb1}")
            B("s_nop 3")
            first_max(B, SP)
            B("s_waitcnt lgkmcnt(0)")
        else:
            att_step(B, "B", t - 16, kreg, vreg)
        if t == 8:
            LD(f"global_load_dword v31, v29, s[{S_DBG}:{S_DBG+1}] sc1"); vm.issue("tag")
        if t == 12:
            li = LD.label("K_init")
            vm.wait("tag")
            LD(f"""
            {li}:
            v_readfirstlane_b32 s94, v31
            s_cmp_lg_u32 s94, 0
            s_cbranch_scc1 {li}_done
            s_sleep 4
            global_load_dword v31, v29, s[{S_DBG}:{S_DBG+1}] sc1
            s_waitcnt vmcnt(0)
            s_branch {li}
            {li}_done:
            """)
            flag_regs(0, S_QUAD, S_J)
        if t == SBA: signal()
        if t == CHKA:
            poll_check(); o_ok[0] = 16
            flag_regs(1, S_QUAD, S_J)
        wo_ok[0] = t >= opt.get("wo_from", 0)
        prev_q = [x for x in vm.q if x in issued and x[0] in ("W", "WO", "O")]
        if MODE == "burst":
            if t % 2 == PAR % 2:
                if t < 0: qL.issue(g, opt.get("ql0", 8))
                tgt = max(need_atoms(g + 3), qH.n + per_t("qhmap", t, opt.get("qh", 15)))
                qH.issue(g, tgt - qH.n)
                qW.issue(g, per_t("warmmap", t, 0))
                if nt_i[0] >= len(tiles) and not qH.cur: qL.issue(g, opt.get("qlend", 12))
            else:
                qL.issue(g, per_t("qlmap", t, opt.get("ql", 11)))
        else:
            W_ = per_t("winmap", t, opt.get("win", 16) if t < 16 else opt.get("winy", 13))
            tgt = max(need_atoms(g + 1) + opt.get("lead", 11), qH.n + per_t("qhmap", t, opt.get("qh", 7)))
            nh = tgt - qH.n; nl = per_t("qlmap", t, opt.get("ql", 5))
            if nt_i[0] >= len(tiles) and not qH.cur: nl = opt.get("qlend", 12)
            qH.issue(g, nh, W_); qW.issue(g, per_t("warmmap", t, 0), W_); qL.issue(g, nl, W_)
        if t == POLLA: poll_issue()
        assert qH.n >= need_atoms(g + 1), ("stream blocked", g)
        for tl in tiles:
            if tile_use(tl) == g + 1: vm.wait(tl)
        hist.append(prev_q)
        lag = opt.get("llag", 1)
        if len(hist) >= lag:
            for it in hist[-lag]: vm.wait(it)
        mark_landed(g + 1)
        log.append((t, qH.n - need_atoms(g + 1), rgB.ndone, rgA.ndone, 32 - len(woq), 24 - len(oq)))
    assert not warmq and not qW.cur
    if opt.get("verbose"):
        for l in log: print("t %d lead %d QB %d OP %d woiss %d oiss %d" % l)

    def tail_barrier(name):
        for a in (A, B, LD): a(f"s_barrier          ; {name}")
    g = G_T0; cur[0] = g
    tail_barrier("T0: all K/V reads done")
    stamp(A, opt, "A", "T0"); stamp(B, opt, "B", "T0")
    for c in range(16, 20):
        addr[("O", c)] = lds.alloc(OT, 6144, g, ("O", c)); assert addr[("O", c)] is not None
    B(f"""
    s_lshl_b32 s49, s{S_QT}, 11
    v_add_u32 v{VB0}, s49, v{VL16}
    s_nop 2
    """)
    epilogue(B, lambda f: (VB0, addr[("O", 16 + f // 2)] + (f % 2) * 1024))
    B("s_waitcnt lgkmcnt(0)")
    stamp(B, opt, "B", "stiss")
    plan = opt.get("tplan", [30])
    def tailA(g, nA):
        avail = chunks_ready_A() * 10 - rgA.ndone % 10
        run_A(max(0, min(avail, nA, 320 - rgA.ndone)), g)
    def ensure(g1, upto):
        for c in range(upto):
            for it in (("WO", c), ("O", c)):
                if it[0] == "O" and (c < 4 or 16 <= c < 20): continue
                if it in landed: continue
                assert it in issued, ("not issued", it, g1)
                vm.wait(it)
        mark_landed(g1)
    def issued_upto():
        c = 0
        while c < 32 and ("WO", c) in issued and (c < 4 or 16 <= c < 20 or ("O", c) in issued): c += 1
        return c
    TSB = opt.get("tsb", 2); TPOLL = opt.get("tpoll", 3); TCHK = opt.get("tchk", 4)
    step = opt.get("tstep", 20)
    k = 0
    while True:
        if k == TSB: signal()
        if k == TCHK:
            if TPOLL == TCHK: poll_issue()
            poll_check(); o_ok[0] = 32
            flag_regs(2, S_GRP, S_OCT)
        nA = plan[k] if k < len(plan) else step
        if rgA.ndone + nA + 10 >= 320: nA = 999
        tailA(g, nA); qL.issue(g, per_t("qtmap", k, opt.get("qt", 18)), whole=True)
        if k == TPOLL and TPOLL != TCHK: poll_issue()
        if opt.get("verbose"): print("tail", k, "OP", rgA.ndone, "wo", 32 - len(woq), "o", 24 - len(oq))
        if rgA.ndone == len(rgA.items) and k >= TCHK: break
        if k + 1 == TSB: B("s_waitcnt vmcnt(0)")
        nn = plan[k + 1] if k + 1 < len(plan) else step
        ensure(g + 1, min(32, issued_upto(), (rgA.ndone + nn + 9) // 10 + opt.get("textra", 1)))
        g += 1; cur[0] = g; k += 1
        tail_barrier(f"T{k}")
        if k == 1:
            for c in range(16, 20): landed[("O", c)] = g
        if k in (1, 2, 4, 6, 8): stamp(A, opt, "A", f"T{k}")
        assert k < 40
    stamp(A, opt, "A", "opend")
    A(f"""
    s_mul_i32 s49, s{S_QT}, 10240
    s_add_u32 s57, s49, 4096
    s_add_u32 s58, s49, 8192
    s_nop 5
    """)
    for f in range(10):
        d = 112 + 4 * f
        for i in range(4):
            A(f"v_cvt_pk_bf16_f32 v{d+i}, v{ACC+8*f+2*i}, v{ACC+8*f+2*i+1}")
        so = ["s49", "s57", "s58"][f // 4]
        A(f"buffer_store_dwordx4 {vr(d,4)}, v{VL16}, {sr(S_PP,4)}, {so} offen offset:{(f%4)*1024} sc1")
    stamp(A, opt, "A", "pst")
    A("s_branch K_final")
    F = B
    F("K_final:")
    F(f"""
    ; item n = lane (+64): g = n/8, r = n%8 ; partial addr = (g/2)*1024 + ((g%2)*32 + 8*oct + r)*16 ; out addr = r*2560 + g*16
    v_lshrrev_b32 v1, 3, v{L}          ; g
    v_and_b32 v2, 7, v{L}              ; r
    v_lshrrev_b32 v3, 1, v1
    v_lshlrev_b32 v3, 10, v3
    v_and_b32 v4, 1, v1
    v_lshlrev_b32 v4, 9, v4
    v_add_u32 v3, v3, v4
    v_lshl_add_u32 v3, v2, 4, v3
    s_lshl_b32 s59, s{S_OCT}, 7
    v_add_u32 v3, s59, v3
    v_add_u32 v4, 4096, v3             ; round 1
    v_mul_u32_u24 v5, 2560, v2
    v_lshl_add_u32 v5, v1, 4, v5
    s_mul_i32 s49, s{S_QT}, 10240
    s_mul_i32 s57, s{S_U}, 5120
    s_add_u32 s49, s49, s57
    """)
    for gg in range(4):
        F(f"s_add_u32 s{52+gg}, s49, {gg*30720}")
    F("s_waitcnt vmcnt(0)")
    F("s_barrier")
    if opt.get("stamp"):
        for nm in ("f0", "f1", "done"):
            while len(STAMPS["A"]) < len(STAMPS["B"]): STAMPS["A"].append("-")
            while len(STAMPS["B"]) < len(STAMPS["A"]): STAMPS["B"].append("-")
            STAMPS["A"].append(nm); STAMPS["B"].append(nm)
    stamp(F, opt, "B", "f0")
    F("s_barrier")
    stamp(F, opt, "B", "f1")
    for gg in range(4):
        F(f"buffer_load_dwordx4 {vr(8+4*gg,4)}, v3, {sr(S_PG,4)}, s{52+gg} offen sc1")
    F("s_mov_b64 exec, 0xffff")
    for gg in range(4):
        F(f"buffer_load_dwordx4 {vr(24+4*gg,4)}, v4, {sr(S_PG,4)}, s{52+gg} offen sc1")
    F("s_mov_b64 exec, -1")
    for rnd in range(2):
        Ac = 40 + 8 * rnd
        for gg in range(4):
            F(f"s_waitcnt vmcnt({7-4*rnd-gg+rnd})")
            for i in range(4):
                r = 8 + 16 * rnd + 4 * gg + i
                if gg == 0:
                    F(f"v_lshlrev_b32 v{Ac+2*i}, 16, v{r}")
                    F(f"v_and_b32 v{Ac+2*i+1}, 0xffff0000, v{r}")
                else:
                    F(f"v_lshlrev_b32 v6, 16, v{r}")
                    F(f"v_and_b32 v7, 0xffff0000, v{r}")
                    F(f"v_add_f32 v{Ac+2*i}, v{Ac+2*i}, v6")
                    F(f"v_add_f32 v{Ac+2*i+1}, v{Ac+2*i+1}, v7")
        for i in range(4):
            F(f"v_cvt_pk_bf16_f32 v{56+4*rnd+i}, v{Ac+2*i}, v{Ac+2*i+1}")
        if rnd == 1: F("s_mov_b64 exec, 0xffff")
        F(f"buffer_store_dwordx4 {vr(56+4*rnd,4)}, v5, {sr(S_OUT,4)}, s{S_OOFF} offen offset:{128*rnd}")
    F("s_mov_b64 exec, -1")
    if opt.get("stamp"):
        F("s_waitcnt vmcnt(0)")
        stamp(F, opt, "B", "done")
        stamp_flush(F, opt)
    F("s_endpgm")
    LD(f"""
    s_cmp_eq_u32 s{S_U}, 1
    s_cbranch_scc0 K_end
    s_barrier           ; F0
    """)
    signal()
    vm.q = []
    poll_issue(); poll_check()
    LD("s_barrier           ; F1")
    LD("K_end:")
    LD("s_endpgm")
    R = Asm()
    for lr, lb, S, Sn, Pc, first in rare:
        R(f"{lr}:")
        maxtree(S, R)
        R(f"""
        v_mov_b32 v{TT+1}, v{TT}
        s_nop 1
        v_permlane32_swap_b32 v{TT}, v{TT+1}
        v_max_f32 v{TT}, v{TT}, v{TT+1}
        v_max_f32 v{V_L+1}, 0, v{TT}           ; delta >= 0
        v_sub_f32 v{A1}, 0, v{V_L+1}
        v_exp_f32 v{A1}, v{A1}                 ; 2^-delta
        s_nop 4
        """)
        for i in range(16): R(f"v_sub_f32 v{S+i}, v{S+i}, v{V_L+1}")
        for i in range(16): R(f"v_sub_f32 v{V_CM+i}, v{V_CM+i}, v{V_L+1}")
        if Sn is not None:
            for i in range(16): R(f"v_sub_f32 v{Sn+i}, v{Sn+i}, v{V_L+1}")
        R(f"v_mul_f32 v{V_L}, v{V_L}, v{A1}")
        if not first:
            for i in range(64): R(f"v_mul_f32 v{V_O+i}, v{V_O+i}, v{A1}")
        for op in soft_ops(S, Pc): R(op)
        R("s_nop 1")
        R(f"s_branch {lb}")
    def nb(x): return sum("s_barrier" in l for l in x.lines)
    nq = nb(LQ) // ncl
    nfin = 2
    assert nb(A) + nfin == nb(B) == nq + nb(LD), (nb(A), nb(B), nq, nb(LD))
    body = P.text() + LQ.text() + LD.text() + C.text() + A.text() + B.text() + "K_codeend:\n" + R.text()
    return dict(name=NAME + "_kernel", body=body, grid=256, block=512, lds=163840, vgpr=256, sgpr=102)

if __name__ == "__main__":
    out = sys.argv[1] if len(sys.argv) > 1 else "v8.s"
    opt = json.loads(sys.argv[2]) if len(sys.argv) > 2 else {}
    write_file(out, [kernel(opt)])
    if opt.get("stamp"):
        open(out, "a").write("; STAMPS2 " + json.dumps(STAMPS) + "\n")
```

```python
import sys, math, struct, json
from asmlib import *
from gen import f2u, QSCALE, THRESH, Cnt, vr, sr, mfma, make_srd, tr_lane_addr

WS_O = 0
WS_P = 16 << 20
WS_F = 40 << 20
WS_T = 64 << 20
INF = 10 ** 9

STAMPS = {"A": [], "B": []}
def stamp(a, opt, grp, name):
    if opt.get("pad_from") == name:
        a("s_memrealtime s[92:93]"); a("s_waitcnt lgkmcnt(0)"); a("s_add_u32 s101, s92, 6000")
    if not opt.get("stamp"): return
    if name not in STAMPS[grp]: STAMPS[grp].append(name)
    a(f"""
    s_memrealtime s[92:93]
    s_waitcnt lgkmcnt(0)
    v_writelane_b32 v255, s92, {STAMPS[grp].index(name)}
    """)
def stamp_flush(a, opt):
    if not opt.get("stamp"): return
    a(f"""
    s_lshl_b32 s88, s2, 3
    s_add_u32 s88, s88, s{S_WAVE}
    s_lshl_b32 s88, s88, 8
    s_add_u32 s88, s88, {WS_T}
    """)
    make_srd(a, 84, 16, "s88", 256)
    a(f"""
    v_lshlrev_b32 v254, 2, v{V_LANE}
    buffer_store_dword v255, v254, s[84:87], 0 offen
    """)

S_X, S_W, S_K, S_V, S_O = 20, 24, 28, 32, 36
S_WAVE, S_OCT, S_U, S_QT, S_J = 40, 60, 61, 62, 63
S_WO, S_OQ, S_PP = 64, 68, 72
S_DBG = 76
S_FL, S_OUT, S_PG, S_WW = 8, 12, 96, 84
S_QUAD, S_GRP = 82, 83
S_OOFF = 100
S_BR, S_B = 4, 7
BLK = 8192
V_O, V_Q, V_SA, V_SB, V_CM, V_P, V_KF, V_VF = 0, 64, 96, 112, 128, 144, 152, 184
V_KA, V_VA, V_L, V_T = 216, 224, 228, 230
V_LANE = 250
WB, XB = 232, 236
VL16 = 243

G_QE = 20
def GS(t): return 21 + t
G_T0 = 53

class LDS:
    def __init__(self):
        self.busy = [-1] * 160
        self.owner = [None] * 160
    def free(self, lo, n, g):
        return all(self.busy[k] <= g for k in range(lo // 1024, (lo + n + 1023) // 1024))
    def take(self, lo, n, who):
        for k in range(lo // 1024, (lo + n + 1023) // 1024):
            self.busy[k] = INF; self.owner[k] = who
    def release(self, lo, n, g):
        for k in range(lo // 1024, (lo + n + 1023) // 1024):
            self.busy[k] = g
    def alloc(self, cands, n, g, who):
        for lo in cands:
            if self.free(lo, n, g):
                self.take(lo, n, who)
                return lo
        return None

def stream_tiles():
    s = [("A", "K", 0), ("A", "K", 1)]
    for t in range(14): s += [("A", "V", t), ("A", "K", t + 2)]
    s += [("A", "V", 14), ("B", "K", 0), ("A", "V", 15), ("B", "K", 1)]
    for t in range(14): s += [("B", "V", t), ("B", "K", t + 2)]
    s += [("B", "V", 14), ("B", "V", 15)]
    return s
def tile_use(tl):
    u, k, j = tl
    t = (max(j - 2, -1) if k == "K" else j) + (16 if u == "B" else 0)
    return GS(t)

class RG:
    def __init__(self, a, afr, nf, ahead):
        self.a = a; self.afr = afr; self.nf = nf; self.ahead = ahead
        self.c = Cnt(a, "lgkmcnt", 15)
        self.items = []; self.nread = 0; self.ndone = 0
    def read_upto(self, n):
        while self.nread < min(n, len(self.items)):
            it = self.items[self.nread]
            if not it["ok"](): break
            need = 2 + (1 if it.get("bread") else 0)
            if len(self.c.q) + need > 15: break
            d = self.afr + 4 * (self.nread % self.nf)
            if it.get("bread"):
                self.a(it["bread"]()); self.c.issue(self.nread)
            va, off, second = it["addr"]()
            self.a(f"ds_read_b64_tr_b16 {vr(d,2)}, v{va} offset:{off}")
            self.a(f"ds_read_b64_tr_b16 {vr(d+2,2)}, v{va} offset:{off+second}")
            self.c.issue(self.nread, 2)
            self.nread += 1
    def run(self, n):
        for _ in range(n):
            i = self.ndone
            self.read_upto(i + self.ahead)
            assert self.nread > i, "operand not readable"
            it = self.items[i]
            self.c.wait(i)
            mfma(self.a, it["acc"], self.afr + 4 * (i % self.nf), it["b"], None if it["first"] else it["acc"])
            self.ndone += 1
            self.read_upto(i + 1 + self.ahead)

def kernel(opt):
    opt.setdefault("mode", "mixed"); opt.setdefault("qb", 8); opt.setdefault("ql", 4); opt.setdefault("extra_until", 26)
    opt.setdefault("qh", 8); opt.setdefault("warmmap", {}); opt.setdefault("npf", 0); opt.setdefault("winy", 16)
    opt.setdefault("hb", [5, 7, 9, 11, 13, 15, 17, 19]); opt.setdefault("tpoll", 4); opt.setdefault("tchk", 5)
    ym = {str(t): 6 for t in range(16, 23)}; ym.update({str(t): 5 for t in range(23, 30)}); ym["-1"] = 10
    opt.setdefault("qhmap", ym); opt.setdefault("qlmap", {str(t): 3 for t in range(16, 28)})
    L = V_LANE
    ntkv = " nt"
    lds = LDS()
    tiles = stream_tiles()
    NPRE = opt.get("npre", 9)
    WPOOL = [b * BLK for b in range(14, 20)]
    LW0 = WPOOL[0]
    LX0, LXSZ, LXN = 5 * BLK, 12288, 3
    RINGS = {"K": [b * BLK for b in range(5)], "V": [b * BLK for b in range(10, 14)]}
    EXTRAS = {"K": [b * BLK for b in (5, 6)], "V": [b * BLK for b in (9, 8, 7)]}
    VBASE = 6 * BLK
    addr = {}
    landed = {}
    A = Asm(); B = Asm(); B.nlabel = 2000
    LQ = Asm(); LQ.nlabel = 4000
    LD = Asm(); LD.nlabel = 5000
    P = Asm()
    P(f"""
    s_cmp_ge_u32 s2, 256
    s_cbranch_scc1 K_end
    s_and_b32 s3, s2, 7
    s_lshr_b32 s{S_BR}, s3, 2      ; branch
    s_mul_i32 s5, s{S_BR}, 40
    s_load_dwordx8 s[8:15], s[0:1], s5      ; x, k, v, wq
    s_load_dwordx2 s[18:19], s[0:1], s5 offset:32   ; wo
    s_load_dwordx2 s[16:17], s[0:1], 96     ; ws
    s_load_dwordx2 s[76:77], s[0:1], 88     ; debug
    s_load_dwordx2 s[80:81], s[0:1], 80     ; out
    v_lshrrev_b32 v1, 6, v0
    v_and_b32 v{L}, 63, v0
    v_readfirstlane_b32 s{S_WAVE}, v1
    s_and_b32 s{S_OCT}, s3, 3
    s_lshr_b32 s6, s2, 3           ; idx 0..31
    s_and_b32 s{S_B}, s6, 7        ; b
    s_lshr_b32 s{S_J}, s6, 3       ; j 0..3
    s_lshr_b32 s{S_U}, s{S_WAVE}, 2
    s_and_b32 s{S_QT}, s{S_WAVE}, 3
    s_lshl_b32 s3, s{S_OCT}, 3
    s_lshl_b32 s6, s{S_J}, 1
    s_add_u32 s6, s6, s3           ; h0 = 8*oct + 2*j
    s_lshl_b32 s43, s{S_B}, 5
    s_add_u32 s43, s43, s6         ; b*32+h0
    s_lshl_b32 s44, s{S_BR}, 3
    s_add_u32 s44, s44, s{S_B}
    s_lshl_b32 s44, s44, 2         ; (br*8+b)*4
    s_add_u32 s{S_QUAD}, s44, s{S_OCT}
    s_add_u32 s{S_GRP}, s44, s{S_J}
    s_cmp_eq_u32 s{S_QT}, 3
    s_cbranch_scc0 K_att
    """)
    C = Asm(); C.nlabel = 7000
    C("K_att:")
    if opt.get("pad_from"):
        C("s_memrealtime s[92:93]"); C("s_waitcnt lgkmcnt(0)"); C("s_add_u32 s101, s92, %d" % (6000 if opt["pad_from"] == "start" else 0))
    if opt.get("stamp"):
        stamp(C, opt, "A", "start"); STAMPS["B"].append("start")
    tr_lane_addr(C, WB, L, 1, 2, 8, 256, True)
    C(f"v_add_u32 v{WB}, {LW0}, v{WB}")
    for t in range(1, 4):
        C(f"v_xor_b32 v{WB+t}, {64*t}, v{WB}")
    C(f"""
    v_and_b32 v1, 31, v{L}              ; j
    v_lshrrev_b32 v2, 5, v{L}           ; h
    v_bfe_u32 v3, v1, 1, 3              ; (j/2)%8
    v_xor_b32 v2, v2, v3
    v_lshlrev_b32 v2, 4, v2
    v_lshl_add_u32 v2, v1, 7, v2
    s_lshl_b32 s49, s{S_QT}, 12         ; qt*32*128
    s_add_u32 s49, s49, {LX0}
    v_add_u32 v{XB}, s49, v2
    v_xor_b32 v{XB+1}, 32, v{XB}
    v_xor_b32 v{XB+2}, 64, v{XB}
    v_xor_b32 v{XB+3}, 96, v{XB}
    """)
    def kv_addr_setup(a):
        t0, t1, t2 = 244, 245, 246
        a(f"""
        v_and_b32 v{t0}, 31, v{L}              ; i
        v_lshrrev_b32 v{t1}, 5, v{L}           ; h
        v_and_b32 v{t2}, 15, v{t0}
        v_xor_b32 v{t1}, v{t1}, v{t2}
        v_lshlrev_b32 v{t1}, 4, v{t1}
        v_lshl_add_u32 v{V_KA}, v{t0}, 8, v{t1}
        """)
        for s in range(1, 8):
            a(f"v_xor_b32 v{V_KA+s}, {32*s}, v{V_KA}")
        tr_lane_addr(a, V_VA, L, t0, t1, 4, 256, True)
        a(f"v_add_u32 v{V_VA}, {VBASE}, v{V_VA}")
        for t in range(1, 4):
            a(f"v_xor_b32 v{V_VA+t}, {64*t}, v{V_VA}")
        a(f"v_mov_b32 v{V_L}, 0")
        a(f"v_mov_b32 v{V_L+1}, 0")
    kv_addr_setup(A)
    C(f"""
    v_lshlrev_b32 v{VL16}, 4, v{L}
    s_waitcnt lgkmcnt(0)
    s_lshl_b32 s44, s{S_BR}, 8
    s_add_u32 s44, s44, s43
    s_add_u32 s44, s44, s{S_U}
    s_mul_i32 s44, s44, 24576
    s_lshl_b32 s42, s{S_GRP}, 2
    s_mul_i32 s45, s42, 30720
    s_add_u32 s45, s45, {WS_P}
    s_mul_i32 s46, s{S_OCT}, 30720
    s_add_u32 s46, s46, s45
    """)
    make_srd(C, S_O, 16, "s44", 24576)
    make_srd(C, S_PG, 16, "s45", 4 * 30720)
    make_srd(C, S_PP, 16, "s46", 30720)
    make_srd(C, S_OUT, 80, None, 8 * 96 * 2560)
    C(f"""
    s_mul_i32 s41, s{S_B}, 96
    s_lshl_b32 s42, s{S_QT}, 5
    s_add_u32 s41, s41, s42
    s_lshl_b32 s42, s{S_OCT}, 3
    s_add_u32 s41, s41, s42
    s_mul_i32 s41, s41, 2560
    s_mul_i32 s42, s{S_BR}, 1280
    s_add_u32 s41, s41, s42
    s_mul_i32 s42, s{S_J}, 320
    s_add_u32 s41, s41, s42
    s_mul_i32 s42, s{S_U}, 160
    s_add_u32 s{S_OOFF}, s41, s42
    s_mov_b32 s53, {hex(f2u(QSCALE))}
    s_mov_b32 s54, {hex(f2u(2.0 ** opt.get("lim", 12)))}
    s_lshl_b32 s55, s{S_QT}, 13
    s_add_u32 s56, s55, 4096
    s_cmp_eq_u32 s{S_U}, 0
    s_cbranch_scc0 K_B
    """)
    B("K_B:")
    if opt.get("codepf", True):
        B(f"""
        s_cmp_eq_u32 s{S_QT}, 1
        s_cbranch_scc0 K_nopf
        s_getpc_b64 s[64:65]
        K_pc:
        s_sub_u32 s64, s64, K_pc-{NAME}_kernel
        s_subb_u32 s65, s65, 0
        s_and_b32 s65, s65, 0xffff
        s_mov_b32 s66, K_codeend-{NAME}_kernel
        s_mov_b32 s67, 0x20000
        s_lshr_b32 s44, s2, 3
        s_lshl_b32 s44, s44, 7
        v_lshlrev_b32 v244, 12, v{L}
        buffer_load_dword v245, v244, s[64:67], s44 offen
        K_nopf:
        """)
    B(f"""
    s_add_u32 s95, s{S_OCT}, s{S_J}
    s_add_u32 s95, s95, s{S_QT}
    s_lshr_b32 s78, s{S_QUAD}, 2
    s_lshl_b32 s42, s78, 11
    s_add_u32 s42, s42, {WS_F}
    """)
    make_srd(B, S_FL, 16, "s42", 2 * 32768 + 2048)
    B(f"""
    v_and_b32 v246, 15, v{L}
    v_lshlrev_b32 v246, 7, v246
    v_lshrrev_b32 v247, 4, v{L}
    v_min_u32 v247, 2, v247
    v_lshlrev_b32 v247, 15, v247
    v_add_u32 v246, v246, v247
    s_lshl_b32 s44, s78, 4
    v_mov_b32 v248, s44
    s_cmp_eq_u32 s95, 0
    s_cbranch_scc0 K_nz
    buffer_load_dword v247, v246, {sr(S_FL,4)}, 0 offen sc1
    K_nz:
    """)

    GW, GX, GK, GV, GO = 4, 8, 12, 16, 20
    a = LQ
    a(f"""
    s_add_u32 s45, s{S_J}, s{S_B}      ; rotation: ((j+b)%5)*2 pairs
    s_cmp_ge_u32 s45, 5
    s_cselect_b32 s46, 5, 0
    s_sub_u32 s45, s45, s46
    s_cmp_ge_u32 s45, 5
    s_cselect_b32 s46, 5, 0
    s_sub_u32 s45, s45, s46
    s_lshl_b32 s45, s45, 1
    v_lshrrev_b32 v1, 4, v{L}           ; l/16
    v_and_b32 v2, 15, v{L}
    ; X: instr i = 2m+Lx : rows 8i + l/8 ; c = (l%8) ^ (l/16) ^ 4Lx
    v_lshrrev_b32 v17, 3, v{L}          ; l/8
    v_and_b32 v3, 7, v{L}
    v_xor_b32 v3, v3, v1
    s_lshl_b32 s49, s{S_U}, 2
    v_xor_b32 v3, s49, v3
    v_lshlrev_b32 v3, 4, v3
    v_mul_u32_u24 v17, 1280, v17
    v_add_u32 v{GX}, v17, v3
    s_mul_i32 s49, s{S_U}, 10240
    v_add_u32 v{GX}, s49, v{GX}
    v_add_u32 v{GX+1}, {20480-2048}, v{GX}
    v_lshlrev_b32 v3, 2, v1
    v_xor_b32 v3, v2, v3                ; c = p ^ 4*(l/16)
    v_lshlrev_b32 v3, 4, v3
    v_lshl_add_u32 v{GV}, v1, 8, v3
    v_lshl_add_u32 v{GW}, v1, 13, v3    ; (l/16)*8192 + c*16
    v_add_u32 v{GW+1}, {1*(32768-1024)}, v{GW}
    v_add_u32 v{GW+2}, {2*(32768-1024)}, v{GW}
    v_add_u32 v{GW+3}, {3*(32768-1024)}, v{GW}
    s_lshl_b32 s50, s{S_U}, 10          ; Lx*1024
    s_lshl_b32 s48, s{S_U}, 12          ; Lx*4096
    s_lshl_b32 s47, s{S_U}, 17
    s_lshl_b32 s52, s45, 1
    s_mul_i32 s41, s{S_B}, 122880       ; x offset
    s_lshl_b32 s42, s6, 8
    s_sub_u32 s46, {640*8192}, s42
    s_lshl_b32 s43, s43, 17
    s_waitcnt lgkmcnt(0)
    """)
    make_srd(a, S_X, 8, "s41", 122880)
    make_srd(a, S_W, 14, "s42", "s46")

    def window(a, vm, w):
        if w and len(vm.q) > w - 1:
            a(f"s_waitcnt vmcnt({w-1})")
            vm.q = vm.q[len(vm.q) - (w - 1):]
    def wrap(a, base_sgpr, add, mod, dst):
        a(f"s_add_u32 {dst}, {base_sgpr}, {add}")
        a(f"s_cmp_ge_u32 {dst}, {mod}")
        a(f"s_cselect_b32 s58, {mod}, 0")
        a(f"s_sub_u32 {dst}, {dst}, s58")
    def issueX(a, vm, i):
        wrap(a, "s45", i, 10, "s59")
        a("s_lshl_b32 s59, s59, 7")
        for g in range(3):
            a(f"s_add_u32 m0, s50, {LX0+(i%LXN)*LXSZ+g*4096}")
            a(f"s_add_u32 s57, s59, {g*40960}")
            for m in range(2):
                window(a, vm, 60)
                a(f"buffer_load_dwordx4 v{GX+m}, {sr(S_X,4)}, s57 offen offset:{m*2048} lds")
                vm.issue(("X", i))
    def issueW_half(a, vm, item):
        _, u, st = item
        wrap(a, "s52", st, 20, "s59")
        a("s_lshl_b32 s59, s59, 18")
        a(f"s_add_u32 m0, s48, {addr[item]}")
        a(f"s_add_u32 s57, s59, s47")
        if u == "B": a("s_add_u32 s57, s57, 256")
        for j in range(4):
            window(a, vm, 60)
            a(f"buffer_load_dwordx4 v{GW+j}, {sr(S_W,4)}, s57 offen offset:{j*1024} lds")
            vm.issue(item)
    def kv_soff(a, tl, extra):
        u, k, j = tl
        a(f"s_add_u32 s57, s91, {(j + (1 if u == 'B' else 0))*8192}")
        a(f"s_and_b32 s57, s57, 0x1ffff")
        a(f"s_add_u32 s57, s57, {extra}")
    def issueKV_half(a, vm, tl):
        u, k, j = tl
        kv_soff(a, tl, "s48")
        if u == "B": a("s_add_u32 s57, s57, 131072")
        a(f"s_add_u32 m0, s48, {addr[tl]}")
        a("s_nop 0")
        for jj in range(4):
            window(a, vm, 60)
            a(f"buffer_load_dwordx4 v{GK+jj if k == 'K' else GV}, {sr(S_K if k == 'K' else S_V,4)}, s57 offen offset:{jj*1024}{ntkv} lds")
            vm.issue(tl)

    HB = opt.get("hb", [12, 14, 16])
    wseq = []; wuse = {}
    for st in range(20):
        wseq.append(("W", "A", st)); wuse[wseq[-1]] = st
        for k, hs in enumerate(HB):
            if hs == st:
                assert k < st
                wseq.append(("W", "B", k)); wuse[wseq[-1]] = st
    nB = len(HB); NPF = opt.get("npf", 3)
    for k in range(nB, nB + NPF):
        wseq.append(("W", "B", k)); wuse[wseq[-1]] = 20
    nH = len(wseq)
    wseq += [("W", "B", k) for k in range(nB + NPF, 20)]
    for i, it in enumerate(wseq[:nH]):
        addr[it] = WPOOL[i % len(WPOOL)]
        if it[1] == "B": landed[it] = wuse[it]
    def w_free_at(i):
        return -1 if i < len(WPOOL) else wuse[wseq[i - len(WPOOL)]] + 1
    for i in range(NPRE):
        addr[tiles[i]] = RINGS[tiles[i][1]][tiles[i][2]]
    vmq = Cnt(a, "vmcnt", 63)
    issueX(a, vmq, 0); issueW_half(a, vmq, wseq[0]); issueW_half(a, vmq, wseq[1])
    make_srd(a, S_K, 10, "s43", 262144)
    make_srd(a, S_V, 12, "s43", 262144)
    a(f"""
    ; key tiles are visited in rotated order, start tile = 2*b (+1 for head B): spreads the memory channels
    s_lshl_b32 s91, s{S_B}, 14
    v_xor_b32 v3, v2, v1                ; p ^ (l/16)
    v_lshlrev_b32 v3, 4, v3
    v_lshl_add_u32 v{GK}, v1, 8, v3
    v_xor_b32 v{GK+1}, 64, v{GK}
    v_xor_b32 v{GK+2}, 128, v{GK}
    v_xor_b32 v{GK+3}, 192, v{GK}
    s_mul_i32 s41, s{S_OCT}, {1024*1280}
    s_mul_i32 s42, s{S_J}, 320
    s_add_u32 s41, s41, s42
    s_sub_u32 s42, {1024*1280}, s42
    """)
    make_srd(a, S_WO, 18, "s41", "s42")
    a(f"""
    s_lshr_b32 s41, s2, 3
    s_lshl_b32 s41, s41, 1
    s_add_u32 s41, s41, s{S_U}
    s_lshl_b32 s42, s{S_OCT}, 6
    s_add_u32 s41, s41, s42
    s_mul_i32 s41, s41, {16*1280}
    s_mul_i32 s44, s{S_QUAD}, {8*24576}
    s_mov_b32 s42, {WS_F}
    """)
    make_srd(a, S_WW, 18, "s41", 16 * 1280)
    make_srd(a, S_OQ, 16, "s44", 8 * 24576)
    make_srd(a, S_FL, 16, "s42", 3 * 32768)
    a(f"""
    v_lshlrev_b32 v30, 4, v{L}
    s_lshr_b32 s44, s{S_QUAD}, 2
    s_lshl_b32 s44, s44, 4
    v_mov_b32 v29, s44
    s_movk_i32 s49, 3277
    """)
    for i in range(5):
        a(f"""
        v_add_u32 v1, {64*i}, v{L}          ; n
        v_mul_u32_u24 v2, s49, v1
        v_lshrrev_b32 v2, 16, v2            ; row
        v_mul_u32_u24 v3, 20, v2
        v_sub_u32 v3, v1, v3                ; g
        v_mul_u32_u24 v2, 1280, v2
        v_lshl_add_u32 v{GO+i}, v3, 4, v2
        """)
        if 0 < i < 4:
            a(f"v_subrev_u32 v{GO+i}, {1024*i}, v{GO+i}")
    if opt.get("tlbpf", False):
        a(f"""
        s_cmp_eq_u32 s{S_U}, 0
        s_cbranch_scc0 K_tl1
        v_mov_b32 v33, 0
        s_mov_b64 exec, 1
        buffer_load_dword v32, v33, {sr(S_K,4)}, s91 offen nt
        buffer_load_dword v32, v33, {sr(S_V,4)}, s91 offen nt
        buffer_load_dword v32, v33, {sr(S_WO,4)}, 0 offen
        s_mov_b32 s44, {1023*1280}
        buffer_load_dword v32, v33, {sr(S_WO,4)}, s44 offen
        s_mov_b64 exec, -1
        s_branch K_tl2
        K_tl1:
        s_mul_i32 s41, s{S_GRP}, {4*30720}
        s_add_u32 s41, s41, {WS_P}
        s_mul_i32 s42, s{S_B}, {96*2560}
        v_mov_b32 v33, s41
        v_mov_b32 v34, s42
        v_mov_b32 v35, 0
        s_mov_b64 exec, 1
        buffer_load_dword v32, v35, {sr(S_OQ,4)}, 0 offen nt
        global_load_dword v32, v33, s[16:17] nt
        global_load_dword v32, v34, s[80:81] nt
        s_mov_b32 s44, {3*32768-128}
        buffer_load_dword v32, v35, {sr(S_FL,4)}, s44 offen nt
        s_mov_b64 exec, -1
        K_tl2:
        """)
        vmq.issue("tlb", 4)
    classes = opt.get("classes", [{"bursts":{"4":4,"9":4,"14":1},"warms":{"14":12,"17":8}},{"bursts":{"6":4,"11":4,"16":1},"warms":{"16":12,"18":8}}])
    ncl = len(classes)
    npro = opt.get("npro", 4)
    wi0 = 2
    issueX(a, vmq, 1)
    for i in range(2, npro):
        issueW_half(a, vmq, wseq[i]); wi0 += 1
    if ncl > 1:
        a(f"s_lshr_b32 s44, s2, 3")
        a(f"s_and_b32 s44, s44, {ncl-1}")
        for ci in range(1, ncl):
            a(f"s_cmp_eq_u32 s44, {ci}")
            a(f"s_cbranch_scc1 K_cls{ci}")
    q0 = list(vmq.q); final = None
    for ci, cl in enumerate(classes):
        if ci: a(f"K_cls{ci}:")
        vmq.q = list(q0)
        ntile = 0; nwarm = 0; wi = wi0; xi = 2; hold = -1
        for st in range(20):
            vmq.wait(("X", st // 2))
            for it in wseq[:nH]:
                if wuse[it] == st: vmq.wait(it)
            a("s_barrier")
            budget = 0 if st in range(hold, hold + opt.get("holdn", 2)) and hold >= 0 else opt.get("catch", 3)
            if st >= 17: budget = 9
            while True:
                xok = xi < 10 and 2 * (xi - LXN) + 2 <= st
                wok = wi < nH and w_free_at(wi) <= st
                need_x = xi < 10 and 2 * xi <= st + 1
                need_w = wi < nH and wuse[wseq[wi]] <= st + 1
                if not (budget > 0 or need_x or need_w): break
                if xok and (not wok or 2 * xi <= wuse[wseq[wi]]):
                    issueX(a, vmq, xi); xi += 1
                elif wok:
                    issueW_half(a, vmq, wseq[wi]); wi += 1; budget -= 1
                else:
                    assert not (need_x or need_w)
                    break
            nb = cl.get("bursts", {}).get(str(st), 0); nw = cl.get("warms", {}).get(str(st), 0)
            for _ in range(nb):
                issueKV_half(a, vmq, tiles[ntile]); ntile += 1
            for i in range(nwarm, nwarm + nw):
                if i % 4 == 0 or i == nwarm: a(f"s_mov_b32 s57, {(i//4)*4096}")
                window(a, vmq, 60)
                a(f"buffer_load_dwordx4 v[32:35], v30, {sr(S_WW,4)}, s57 offen offset:{(i%4)*1024}")
                vmq.issue("warm")
            nwarm += nw
            if nb or nw: hold = st + 1
        assert wi == nH and xi == 10 and ntile == NPRE and nwarm % 4 == 0, (wi, xi, ntile, nwarm)
        assert final is None or final == nwarm
        final = nwarm_h = nwarm
        for tl in tiles[:NPRE]: vmq.wait(tl)
        for it in wseq[:nH]: vmq.wait(it)
        vmq.q = []
        if ci < ncl - 1: a("s_branch K_clsj")
    if ncl > 1: a("K_clsj:")
    a(f"""
    s_mul_i32 s51, s{S_U}, 5120
    s_mul_i32 s90, s{S_U}, {16*1280}
    """)
    for tl in tiles[:NPRE]:
        lds.take(addr[tl], BLK, tl); landed[tl] = G_QE
    for i in range(nH - len(WPOOL), nH):
        if wuse[wseq[i]] == 20: lds.take(addr[wseq[i]], BLK, wseq[i])
        else: lds.release(addr[wseq[i]], BLK, wuse[wseq[i]] + 1)
    for i in range(7, 10):
        lds.release(LX0 + (i % LXN) * LXSZ, LXSZ, 2 * i + 2)

    QA = V_KF
    AFs, BFs = [96, 64], [128, 144]
    XC = [8 * i for i in range(12)] + [128, 136, 144, 216, 224]
    def xcap(k): return XC[k % len(XC)]
    for k in range(len(XC), 20):
        assert k - len(XC) < nB and HB[k - len(XC)] < k, "capture slot still in use"
    cur = [0]
    rgB = RG(B, 96, 8, 7)
    for k in range(20):
        it = ("W", "B", k)
        for ks in range(2):
            for t in range(4):
                rgB.items.append(dict(acc=QA + 16 * t, first=(k == 0 and ks == 0), b=xcap(k) + 4 * ks, chunk=it,
                    ok=(lambda it=it: landed.get(it, INF) <= cur[0]),
                    addr=(lambda it=it, ks=ks, t=t: (WB + t, addr[it] - LW0 + ks * 4096, 1024))))
    for grp, a in (("A", A), ("B", B)):
        for st in range(20):
            cur[0] = st
            if grp == "B" and st == 6:
                a(f"""
                s_cmp_eq_u32 s95, 0
                s_cbranch_scc0 K_na
                s_waitcnt vmcnt(0)
                s_mov_b32 s44, 0
                K_pick:
                s_add_u32 s44, s44, 1
                v_cmp_eq_u32 vcc, s44, v247
                s_cbranch_vccnz K_pick
                v_mov_b32 v249, s44
                s_mov_b64 exec, 1
                global_store_dword v248, v249, s[{S_DBG}:{S_DBG+1}] sc1
                s_mov_b64 exec, -1
                K_na:
                """)
            a("s_barrier")
            if st % opt.get("qstamp", 5) == 0 and (grp == "B" or opt.get("qstamp", 5) == 5): stamp(a, opt, grp, f"q{st}")
            xo_ = ((st // 2) % LXN) * LXSZ
            if grp == "B":
                if st in HB: rgB.run(8 * HB.count(st))
                assert not rgB.c.q
                for ks in range(2):
                    a(f"ds_read_b128 {vr(xcap(st)+4*ks,4)}, v{XB+2*(st%2)+ks} offset:{xo_}")
                a("s_waitcnt lgkmcnt(0)")
                continue
            reads = []
            AF, BF = AFs[st % 2], BFs[st % 2]
            for ks in range(2):
                wo_ = addr[("W", grp, st)] - LW0 + ks * 4096
                reads.append(f"ds_read_b128 {vr(BF+4*ks,4)}, v{XB+2*(st%2)+ks} offset:{xo_}")
                for t in range(4):
                    r = AF + 16 * ks + 4 * t
                    reads.append(f"ds_read_b64_tr_b16 {vr(r,2)}, v{WB+t} offset:{wo_}")
                    reads.append(f"ds_read_b64_tr_b16 {vr(r+2,2)}, v{WB+t} offset:{wo_+1024}")
            nrd = [0]
            def rd(n):
                for _ in range(n):
                    if reads:
                        a(reads.pop(0)); nrd[0] += 1
                        if nrd[0] == 14: a("s_waitcnt lgkmcnt(10)")
            if st > 0:
                AF, BF = AFs[(st - 1) % 2], BFs[(st - 1) % 2]
                for ks in range(2):
                    for t in range(4):
                        mfma(a, QA + 16 * t, AF + 16 * ks + 4 * t, BF + 4 * ks, None if (st == 1 and ks == 0) else QA + 16 * t)
                        rd(3)
            rd(99)
            a("s_waitcnt lgkmcnt(0)")

    T = V_T - 0
    TT = 244
    def maxtree(S, emit):
        t = TT
        emit(f"v_max3_f32 v{t}, v{S}, v{S+1}, v{S+2}")
        emit(f"v_max3_f32 v{t+1}, v{S+3}, v{S+4}, v{S+5}")
        emit(f"v_max3_f32 v{t+2}, v{S+6}, v{S+7}, v{S+8}")
        emit(f"v_max3_f32 v{t+3}, v{S+9}, v{S+10}, v{S+11}")
        emit(f"v_max3_f32 v{t+4}, v{S+12}, v{S+13}, v{S+14}")
        emit(f"v_max3_f32 v{t}, v{t}, v{t+1}, v{S+15}")
        emit(f"v_max3_f32 v{t+2}, v{t+2}, v{t+3}, v{t+4}")
        emit(f"v_max_f32 v{t}, v{t}, v{t+2}")
    def rebase(a, grp, k, ad):
        off = ad - (VBASE if k == "V" else 0)
        assert 0 <= off and off + BLK <= 65536
        return off
    rare = []
    def convert_q(a, mid=None):
        for t in range(4):
            for i in range(8):
                r = QA + 16 * t + 2 * i
                a(f"v_mul_f32 v{r}, s53, v{r}")
                a(f"v_mul_f32 v{r+1}, s53, v{r+1}")
                a(f"v_cvt_pk_bf16_f32 v{V_Q+8*t+i}, v{r}, v{r+1}")
                if mid: mid(t, i)
    PB_ = [V_P, 232]; A0, A1 = 230, 231; ET = [244 + i for i in range(6)]
    def soft_ops(S, P):
        ops = []
        e = lambda i: ET[i % 6]
        def ex(i): ops.append(f"v_exp_f32 v{e(i)}, v{S+i}")
        def post(i):
            if i == 1:
                ops.append(f"v_add_f32 v{A0}, v{e(0)}, v{e(1)}")
            elif i == 3:
                ops.append(f"v_add_f32 v{A1}, v{e(2)}, v{e(3)}")
            else:
                ops.append(f"v_add_f32 v{A0}, v{A0}, v{e(i-1)}")
                ops.append(f"v_add_f32 v{A1}, v{A1}, v{e(i)}")
            ops.append(f"v_cvt_pk_bf16_f32 v{P+i//2}, v{e(i-1)}, v{e(i)}")
        ex(0); ex(1); ex(2)
        pend = []
        for i in range(3, 16):
            ex(i)
            if i % 2 == 0: post(i - 1 - 0) if False else None
            if i % 2 == 1: post(i - 2)
        post(15)
        ops.append(f"v_add_f32 v{A0}, v{A0}, v{A1}")
        return spread(ops)
    def spread(ops):
        out = []; i = 0
        while i < len(ops):
            if i >= 3 and ops[i].startswith("v_exp") and i + 1 < len(ops) and ops[i + 1].startswith("v_exp") and i + 2 < len(ops) \
               and not ops[i + 2].startswith("v_exp"):
                da = ops[i].split()[1].rstrip(","); db = ops[i + 1].split()[1].rstrip(",")
                srcs = [t.rstrip(",") for t in ops[i + 2].split()[2:]]
                if da not in srcs and db not in srcs:
                    out += [ops[i], ops[i + 2], ops[i + 1]]; i += 3; continue
            out.append(ops[i]); i += 1
        for k in range(len(out) - 1):
            if out[k].startswith("v_exp") and not out[k + 1].startswith("v_exp"):
                d = out[k].split()[1].rstrip(",")
                if d in [t.rstrip(",") for t in out[k + 1].split()[2:]]:
                    out.insert(k + 1, "s_nop 0")
        return out
    NA = opt.get("na", 18)
    def first_max(a, SP):
        maxtree(SP, a)
        a(f"""
        v_mov_b32 v{TT+1}, v{TT}
        s_nop 1
        v_permlane32_swap_b32 v{TT}, v{TT+1}
        v_max_f32 v{TT}, v{TT}, v{TT+1}
        """)
        for i in range(16):
            a(f"v_sub_f32 v{V_SA+i}, v{SP+i}, v{TT}")
            a(f"v_sub_f32 v{V_CM+i}, 0, v{TT}")
        for op in soft_ops(V_SA, PB_[0])[:NA]: a(op)
    def att_step(a, grp, t_, kreg, vreg):
        Scur, Snxt = (V_SA, V_SB) if t_ % 2 == 0 else (V_SB, V_SA)
        Pc, Pn = PB_[t_ % 2], PB_[(t_ + 1) % 2]
        do_qk = t_ < 15
        c = Cnt(a, "lgkmcnt", 15)
        fill = soft_ops(Scur, Pc)[NA:]
        def rdV(i):
            u, t = divmod(i, 4)
            r = V_VF + 4 * i
            a(f"ds_read_b64_tr_b16 {vr(r,2)}, v{V_VA+t} offset:{vreg+u*4096}")
            a(f"ds_read_b64_tr_b16 {vr(r+2,2)}, v{V_VA+t} offset:{vreg+u*4096+2048}")
            c.issue(("V", i), 2)
        def emit(f, n):
            for _ in range(n):
                if f: a(f.pop(0))
        per = -(-len(fill) // 8)
        for s in range(8):
            if do_qk: mfma(a, Snxt, V_KF + 4 * s, V_Q + 4 * s, V_CM if s == 0 else Snxt)
            if s < 7: rdV(s)
            emit(fill, per)
        assert not fill
        lr = a.label("K_rare"); lb = a.label("K_back")
        a(f"v_cmp_nge_f32 vcc, s54, v{A0}")
        c.wait(("V", 3))
        a(f"s_cbranch_vccnz {lr}")
        a(f"{lb}:")
        rare.append((lr, lb, Scur, Snxt if do_qk else None, Pc, t_ == 0))
        nxt = soft_ops(Snxt, Pn)[:NA] if do_qk else []
        pern = -(-len(nxt) // 6)
        kn = 0
        for i in range(8):
            u, t = divmod(i, 4)
            if i == 4: c.wait(("V", 7))
            mfma(a, V_O + 16 * t, V_VF + 4 * i, Pc + 4 * u, None if (t_ == 0 and u == 0) else V_O + 16 * t)
            if i == 0:
                rdV(7)
                a(f"v_add_f32 v{V_L}, v{V_L}, v{A0}")
            if t_ < 14 and i >= 1:
                for _ in range(2 if i < 3 else 1):
                    if kn < 8:
                        a(f"ds_read_b128 {vr(V_KF+4*kn,4)}, v{V_KA+kn} offset:{kreg}")
                        c.issue(("K", kn)); kn += 1
            if i == 1 and do_qk and t_ >= 14: a("s_nop 3")
            if i >= 2: emit(nxt, pern)
        assert not nxt and (kn == 8 or t_ >= 14)
        if t_ < 14: a("s_waitcnt lgkmcnt(0)")
    def epilogue(a, lds_addr=None, f0=0, f1=8):
        if f0 == 0: a(f"""
        s_nop 0
        s_nop 0
        v_mov_b32 v{V_L+1}, v{V_L}
        s_nop 1
        v_permlane32_swap_b32 v{V_L}, v{V_L+1}
        v_add_f32 v{V_L}, v{V_L}, v{V_L+1}
        v_rcp_f32 v{V_L}, v{V_L}
        s_nop 3
        """)
        for f in range(f0, f1):
            t, u = divmod(f, 2)
            b = V_O + 16 * t + 8 * u
            for i in range(8):
                a(f"v_mul_f32 v{b+i}, v{b+i}, v{V_L}")
            d = V_KF + 4 * f
            for i in range(4):
                a(f"v_cvt_pk_bf16_f32 v{d+i}, v{b+2*i}, v{b+2*i+1}")
            so = "s55" if f < 4 else "s56"
            if not (opt.get("noost") and not lds_addr):
                a(f"buffer_store_dwordx4 {vr(d,4)}, v{VL16}, {sr(S_O,4)}, {so} offen offset:{(f%4)*1024}{opt.get('ost', ' sc1')}")
            if lds_addr:
                va, off = lds_addr(f)
                a(f"ds_write_b128 v{va}, {vr(d,4)} offset:{off}")

    ACC, VA0, VB0 = 0, 232, 236
    BR = [112 + 4 * i for i in range(4)]
    rgA = RG(A, 80, 8, opt.get("ahead", 6))
    for c in range(32):
        for ks in range(2):
            kk = 2 * c + ks
            for nt in range(5):
                d = dict(acc=ACC + 16 * nt, first=(kk == 0), chunk=c,
                         addr=(lambda c=c, ks=ks, nt=nt: (VA0 + (addr[("WO", c)] + ks * 5120 + nt * 64) // 61440,
                                                          (addr[("WO", c)] + ks * 5120 + nt * 64) % 61440, 1280)))
                if c < 4:
                    d["b"] = V_KF + 4 * kk
                    d["ok"] = (lambda c=c: landed.get(("WO", c), INF) <= cur[0])
                else:
                    d["b"] = BR[kk % 4]
                    d["ok"] = (lambda c=c: landed.get(("WO", c), INF) <= cur[0] and landed.get(("O", c), INF) <= cur[0])
                    if nt == 0:
                        d["bread"] = (lambda c=c, ks=ks, kk=kk: f"ds_read_b128 {vr(BR[kk%4],4)}, v{VB0+(addr[('O',c)]+ks*1024)//61440} offset:{(addr[('O',c)]+ks*1024)%61440}")
                rgA.items.append(d)
    def chunks_ready_A():
        n = rgA.ndone // 10
        k = 0
        while n + k < 32 and rgA.items[(n + k) * 10]["ok"](): k += 1
        return k
    def run_A(n, g):
        n0 = rgA.ndone // 10
        rgA.run(n)
        for c in range(n0, rgA.ndone // 10):
            lds.release(addr[("WO", c)], 10240, g + 1)
            if c >= 4: lds.release(addr[("O", c)], 6144, g + 1)

    vm = Cnt(LD, "vmcnt", 63)
    def head_off(a, c, scale, dst):
        m, u = (c // 4) % 4, c // 16
        a(f"""
        s_add_u32 {dst}, s{S_J}, {m}
        s_and_b32 {dst}, {dst}, 3
        s_lshl_b32 {dst}, {dst}, 1
        s_add_u32 {dst}, {dst}, {u}
        s_mul_i32 {dst}, {dst}, {scale}
        """)
    def item_atoms(it):
        kind = it[0]; atoms = []
        if kind in ("A", "B"):
            u, k, j = it
            def setup(a):
                kv_soff(a, it, "s48")
                if u == "B": a("s_add_u32 s57, s57, 131072")
            gs = [f"s_add_u32 m0, s48, {addr[it]}", "s_nop 0"]
            for jj in range(4):
                atoms.append((gs, f"buffer_load_dwordx4 v{GK+jj if k == 'K' else GV}, {sr(S_K if k == 'K' else S_V,4)}, s57 offen offset:{jj*1024}{ntkv} lds"))
        elif kind == "W":
            def setup(a):
                wrap(a, "s52", it[2], 20, "s49")
                a("s_lshl_b32 s49, s49, 18")
                a("s_add_u32 s49, s49, s47")
            gs = [f"s_add_u32 m0, s48, {addr[it]}", f"s_add_u32 s57, s49, 256"]
            for j in range(4):
                atoms.append((gs, f"buffer_load_dwordx4 v{GW+j}, {sr(S_W,4)}, s57 offen offset:{j*1024} lds"))
        elif kind == "WO":
            c = it[1]
            def setup(a):
                head_off(a, c, 128 * 1280, "s49")
                a("s_add_u32 s49, s49, s90")
            so = f"s_add_u32 s57, s49, {(c%4)*32*1280}"
            gs = [f"s_add_u32 m0, s51, {addr[it]}", so]
            for i in range(4):
                atoms.append((gs, f"buffer_load_dwordx4 v{GO+i}, {sr(S_WO,4)}, s57 offen offset:{i*1024} lds"))
            atoms.append(([f"s_add_u32 m0, s51, {addr[it]+4096}", so], f"buffer_load_dwordx4 v{GO+4}, {sr(S_WO,4)}, s57 offen lds"))
        elif kind == "O":
            c = it[1]
            def setup(a):
                head_off(a, c, 24576, "s49")
                a("s_add_u32 s49, s49, s50")
            for qt in range(3):
                gs = [f"s_add_u32 m0, s50, {addr[it]+qt*2048}", f"s_add_u32 s57, s49, {qt*8192+(c%4)*2048}"]
                atoms.append((gs, f"buffer_load_dwordx4 v30, {sr(S_OQ,4)}, s57 offen{opt.get('old', ' sc1')} lds"))
        else:
            def setup(a): pass
            gs = [f"s_mov_b32 s57, {it[1]*4096}"]
            for i in range(4):
                atoms.append((gs, f"buffer_load_dwordx4 v[32:35], v30, {sr(S_WW,4)}, s57 offen offset:{i*1024}"))
        return setup, atoms
    issued = []
    class Q:
        def __init__(self, pick): self.pick = pick; self.cur = None; self.n = 0
        def issue(self, g, quota, win=60, whole=False):
            n = 0
            while n < quota:
                fresh = False
                if not self.cur:
                    it = self.pick(g)
                    if it is None: break
                    self.cur = [it, *item_atoms(it)]
                it, setup, atoms = self.cur
                setup(LD); last = None
                while atoms and (n < quota or whole):
                    gs, line = atoms.pop(0)
                    if gs is not last:
                        for l in gs: LD(l)
                        last = gs
                    window(LD, vm, win)
                    LD(line); vm.issue(it); n += 1; self.n += 1
                if not atoms:
                    issued.append(it); self.cur = None
            return n
    nt_i = [NPRE]
    def pick_tile(g):
        if nt_i[0] >= len(tiles): return None
        tl = tiles[nt_i[0]]
        cands = RINGS[tl[1]] + (EXTRAS[tl[1]] if tile_use(tl) < GS(opt.get("extra_until", 15)) else [])
        ad = lds.alloc(cands, BLK, g, tl)
        if ad is None: return None
        addr[tl] = ad; nt_i[0] += 1
        return tl
    WOY = [LW0 + i * 10240 for i in range(4)] + [LX0]
    OY = [LW0 + 40960] + [LX0 + 10240 + i * 6144 for i in range(5)]
    OT = [i * 6144 for i in range(4)]
    WOT = [24576] + [10 * BLK + i * 10240 for i in range(3)]
    OT2 = [24576 + 10240]
    def cands_for(it, g):
        if it[0] == "W": return WPOOL, BLK
        late = nt_i[0] >= len(tiles)
        xfree = late or tile_use(tiles[nt_i[0]]) >= GS(opt.get("extra_until", 15))
        if it[0] == "WO": return (WOY if xfree else WOY[:4]) + (WOT if late else []), 10240
        return OY + (OT2 if late else []) + (OT if g >= G_T0 else []), 6144
    wB = list(wseq[nH:]); woq = [("WO", c) for c in range(32)]; oq = [("O", c) for c in list(range(4, 16)) + list(range(20, 32))]
    o_ok = [4]; wo_ok = [True]
    def pick_l(g):
        if wB: cand = [wB]
        else:
            o_c = oq[0][1] if (oq and oq[0][1] < o_ok[0]) else None
            w_c = woq[0][1] if (woq and wo_ok[0]) else None
            cand = []
            if o_c is not None and (w_c is None or o_c < w_c): cand = [oq] + ([woq] if w_c is not None else [])
            elif w_c is not None: cand = [woq] + ([oq] if o_c is not None else [])
        for q in cand:
            it = q[0]
            cs, n = cands_for(it, g)
            ad = lds.alloc(cs, n, g, it)
            if ad is not None:
                addr[it] = ad; q.pop(0)
                return it
        return None
    warmq = [("warm", i) for i in range(nwarm_h // 4, 5)]
    qH = Q(pick_tile); qL = Q(pick_l); qW = Q(lambda g: warmq.pop(0) if warmq else None)
    qH.n = NPRE * 4
    def flag_regs(fset, grp_sgpr, mem_sgpr):
        LD(f"""
        s_lshl_b32 s44, s{grp_sgpr}, 9
        s_add_u32 s79, s44, {fset*32768}
        s_lshl_b32 s44, s{mem_sgpr}, 7
        v_mov_b32 v26, s44
        v_and_b32 v28, 3, v{L}
        v_min_u32 v28, 2, v28
        s_add_u32 s44, s{mem_sgpr}, 1
        v_add_u32 v28, s44, v28
        v_and_b32 v28, 3, v28
        v_lshlrev_b32 v28, 7, v28
        v_mov_b32 v27, s94
        """)
    def signal():
        lp = LD.label("K_sig")
        LD(f"""
        s_cmp_eq_u32 s{S_U}, 1
        s_cbranch_scc0 {lp}
        s_mov_b64 exec, 1
        buffer_store_dword v27, v26, {sr(S_FL,4)}, s79 offen sc1
        s_mov_b64 exec, -1
        {lp}:
        """)
    def poll_issue():
        LD(f"buffer_load_dword v31, v28, {sr(S_FL,4)}, s79 offen sc1"); vm.issue("poll")
    def poll_check():
        lp = LD.label("K_poll")
        vm.wait("poll")
        LD(f"""
        {lp}:
        v_cmp_eq_u32 vcc, s94, v31
        s_and_b32 s49, vcc_lo, 7
        s_cmp_eq_u32 s49, 7
        s_cbranch_scc1 {lp}_ok
        s_sleep 1
        buffer_load_dword v31, v28, {sr(S_FL,4)}, s79 offen sc1
        s_waitcnt vmcnt(0)
        s_branch {lp}
        {lp}_ok:
        """)
    def mark_landed(g):
        for it in issued:
            if it not in landed and it not in vm.q: landed[it] = g

    SBA = opt.get("sba", 22); POLLA = opt.get("polla", 26); CHKA = opt.get("chka", 28)
    MODE = opt.get("mode", "burst"); PAR = opt.get("par", 1)
    EP = opt.get("ep", [0, 3, 6, 8]); NEP = len(EP) - 1
    b_state = ["gemm"]
    log = []; hist = []
    def need_atoms(g):
        return sum(4 for tl in tiles if tile_use(tl) <= g)
    def per_t(name, t, dflt):
        return opt.get(name, {}).get(str(t), dflt)
    for g in range(G_QE, G_T0):
        cur[0] = g
        t = g - 21
        ua, ta = ("A", t) if t < 16 else ("B", t - 16)
        att = A if ua == "A" else B
        kreg = vreg = None
        if t >= 0:
            if ta < 14: kreg = rebase(att, ua, "K", addr[(ua, "K", ta + 2)])
            vreg = rebase(att, ua, "V", addr[(ua, "V", ta)])
        if t == 15: kb0 = rebase(B, "B", "K", addr[("B", "K", 0)])
        if t == SBA: A("s_waitcnt vmcnt(0)")
        for a in (A, B, LD):
            a(f"s_barrier          ; G{g}")
        for tl in tiles:
            if tile_use(tl) == g:
                assert landed.get(tl, INF) <= g, tl
                lds.release(addr[tl], BLK, g + 1)
        if t < 0 or t % opt.get("sstamp", 4) == 0:
            if t >= 16 or opt.get("sstamp", 4) == 4: stamp(A, opt, "A", f"s{t}")
            if t < 17 or opt.get("sstamp", 4) == 4: stamp(B, opt, "B", f"s{t}")
        if opt.get("prio", True):
            if t == -1: A("s_setprio 2")
            if t == 16: A("s_setprio 0")
            if t == 15: B("s_setprio 2")
        if t == -1:
            AF, BF = AFs[1], BFs[1]
            KP = 96; SP = V_CM
            c = Cnt(A, "lgkmcnt", 15)
            for s in range(8):
                A(f"ds_read_b128 {vr(KP+4*s,4)}, v{V_KA+s} offset:{addr[('A','K',0)]}")
                c.issue(("K", s))
            for tt in range(4):
                for ks in range(2):
                    mfma(A, QA + 16 * tt, AF + 16 * ks + 4 * tt, BF + 4 * ks, QA + 16 * tt)
            A("s_nop 5")
            def mid(tt, i):
                if tt > 0 and i in (1, 5):
                    s = 2 * (tt - 1) + (i // 4)
                    c.wait(("K", s))
                    mfma(A, SP, KP + 4 * s, V_Q + 4 * s, None if s == 0 else SP)
            convert_q(A, mid)
            A("s_nop 1")
            for s in (6, 7):
                c.wait(("K", s))
                mfma(A, SP, KP + 4 * s, V_Q + 4 * s, SP)
            for s in range(8):
                A(f"ds_read_b128 {vr(V_KF+4*s,4)}, v{V_KA+s} offset:{addr[('A','K',1)]}")
            A("s_nop 3")
            first_max(A, SP)
            A("s_waitcnt lgkmcnt(0)")
        elif t < 16:
            att_step(A, "A", t, kreg, vreg)
        elif t < 16 + NEP - 1:
            if t == 16: A("s_nop 4")
            epilogue(A, None, EP[t - 16], EP[t - 15])
        elif t == 16 + NEP - 1:
            if t == 16: A("s_nop 4")
            epilogue(A, None, EP[t - 16], EP[t - 15])
            tr_lane_addr(A, VA0, L, 244, 245, 8, 320, False)
            A(f"""
            v_add_u32 v{VA0+1}, 61440, v{VA0}
            v_add_u32 v{VA0+2}, 122880, v{VA0}
            s_lshl_b32 s49, s{S_QT}, 11
            v_add_u32 v{VB0}, s49, v{VL16}
            v_add_u32 v{VB0+1}, 61440, v{VB0}
            v_add_u32 v{VB0+2}, 122880, v{VB0}
            """)
        else:
            avail = chunks_ready_A() * 10 - rgA.ndone % 10
            n = max(0, min(avail, per_t("qamap", t, opt.get("qa", 10)), 160 - rgA.ndone))
            run_A(n, g)
        if t < 15:
            if b_state[0] == "gemm":
                k = 0; n0 = rgB.ndone // 8
                while n0 + k < 20 and rgB.items[(n0 + k) * 8]["ok"](): k += 1
                n = max(0, min(8 * k - rgB.ndone % 8, per_t("qbmap", t, opt.get("qb", 10))))
                rgB.run(n)
                for cc in range(n0, rgB.ndone // 8): lds.release(addr[("W", "B", cc)], BLK, g + 1)
                if rgB.ndone == len(rgB.items): b_state[0] = "conv"
            elif b_state[0] == "conv":
                kv_addr_setup(B)
                convert_q(B)
                b_state[0] = "ready"
                stamp(B, opt, "B", "qdone")
        elif t == 15:
            assert b_state[0] == "ready", "Q(B) not finished in time"
            KP = 96; SP = V_CM
            c = Cnt(B, "lgkmcnt", 15)
            for s in range(8):
                B(f"ds_read_b128 {vr(KP+4*s,4)}, v{V_KA+s} offset:{kb0}")
                c.issue(("K", s))
            for s in range(8):
                c.wait(("K", s))
                mfma(B, SP, KP + 4 * s, V_Q + 4 * s, None if s == 0 else SP)
            kb1 = rebase(B, "B", "K", addr[("B", "K", 1)])
            for s in range(8):
                B(f"ds_read_b128 {vr(V_KF+4*s,4)}, v{V_KA+s} offset:{kb1}")
            B("s_nop 3")
            first_max(B, SP)
            B("s_waitcnt lgkmcnt(0)")
        else:
            att_step(B, "B", t - 16, kreg, vreg)
        if t == 8:
            LD(f"global_load_dword v31, v29, s[{S_DBG}:{S_DBG+1}] sc1"); vm.issue("tag")
        if t == 12:
            li = LD.label("K_init")
            vm.wait("tag")
            LD(f"""
            {li}:
            v_readfirstlane_b32 s94, v31
            s_cmp_lg_u32 s94, 0
            s_cbranch_scc1 {li}_done
            s_sleep 4
            global_load_dword v31, v29, s[{S_DBG}:{S_DBG+1}] sc1
            s_waitcnt vmcnt(0)
            s_branch {li}
            {li}_done:
            """)
            flag_regs(0, S_QUAD, S_J)
        if t == SBA: signal()
        if t == CHKA:
            poll_check(); o_ok[0] = 16
            flag_regs(1, S_QUAD, S_J)
        wo_ok[0] = t >= opt.get("wo_from", 0)
        prev_q = [x for x in vm.q if x in issued and x[0] in ("W", "WO", "O")]
        if MODE == "burst":
            if t % 2 == PAR % 2:
                if t < 0: qL.issue(g, opt.get("ql0", 8))
                tgt = max(need_atoms(g + 3), qH.n + per_t("qhmap", t, opt.get("qh", 15)))
                qH.issue(g, tgt - qH.n)
                qW.issue(g, per_t("warmmap", t, 0))
                if nt_i[0] >= len(tiles) and not qH.cur: qL.issue(g, opt.get("qlend", 12))
            else:
                qL.issue(g, per_t("qlmap", t, opt.get("ql", 11)))
        else:
            W_ = per_t("winmap", t, opt.get("win", 16) if t < 16 else opt.get("winy", 13))
            tgt = max(need_atoms(g + 1) + opt.get("lead", 11), qH.n + per_t("qhmap", t, opt.get("qh", 7)))
            nh = tgt - qH.n; nl = per_t("qlmap", t, opt.get("ql", 5))
            if nt_i[0] >= len(tiles) and not qH.cur: nl = opt.get("qlend", 12)
            qH.issue(g, nh, W_); qW.issue(g, per_t("warmmap", t, 0), W_); qL.issue(g, nl, W_)
        if t == POLLA: poll_issue()
        assert qH.n >= need_atoms(g + 1), ("stream blocked", g)
        for tl in tiles:
            if tile_use(tl) == g + 1: vm.wait(tl)
        hist.append(prev_q)
        lag = opt.get("llag", 1)
        if len(hist) >= lag:
            for it in hist[-lag]: vm.wait(it)
        mark_landed(g + 1)
        log.append((t, qH.n - need_atoms(g + 1), rgB.ndone, rgA.ndone, 32 - len(woq), 24 - len(oq)))
    assert not warmq and not qW.cur
    if opt.get("verbose"):
        for l in log: print("t %d lead %d QB %d OP %d woiss %d oiss %d" % l)

    def tail_barrier(name):
        for a in (A, B, LD): a(f"s_barrier          ; {name}")
    g = G_T0; cur[0] = g
    tail_barrier("T0: all K/V reads done")
    stamp(A, opt, "A", "T0"); stamp(B, opt, "B", "T0")
    for c in range(16, 20):
        addr[("O", c)] = lds.alloc(OT, 6144, g, ("O", c)); assert addr[("O", c)] is not None
    B(f"""
    s_lshl_b32 s49, s{S_QT}, 11
    v_add_u32 v{VB0}, s49, v{VL16}
    s_nop 2
    """)
    epilogue(B, lambda f: (VB0, addr[("O", 16 + f // 2)] + (f % 2) * 1024))
    B("s_waitcnt lgkmcnt(0)")
    stamp(B, opt, "B", "stiss")
    plan = opt.get("tplan", [30])
    def tailA(g, nA):
        avail = chunks_ready_A() * 10 - rgA.ndone % 10
        run_A(max(0, min(avail, nA, 320 - rgA.ndone)), g)
    def ensure(g1, upto):
        for c in range(upto):
            for it in (("WO", c), ("O", c)):
                if it[0] == "O" and (c < 4 or 16 <= c < 20): continue
                if it in landed: continue
                assert it in issued, ("not issued", it, g1)
                vm.wait(it)
        mark_landed(g1)
    def issued_upto():
        c = 0
        while c < 32 and ("WO", c) in issued and (c < 4 or 16 <= c < 20 or ("O", c) in issued): c += 1
        return c
    TSB = opt.get("tsb", 2); TPOLL = opt.get("tpoll", 3); TCHK = opt.get("tchk", 4)
    step = opt.get("tstep", 20)
    k = 0
    while True:
        if k == TSB: signal()
        if k == TCHK:
            if TPOLL == TCHK: poll_issue()
            poll_check(); o_ok[0] = 32
            flag_regs(2, S_GRP, S_OCT)
        nA = plan[k] if k < len(plan) else step
        if rgA.ndone + nA + 10 >= 320: nA = 999
        tailA(g, nA); qL.issue(g, per_t("qtmap", k, opt.get("qt", 18)), whole=True)
        if k == TPOLL and TPOLL != TCHK: poll_issue()
        if opt.get("verbose"): print("tail", k, "OP", rgA.ndone, "wo", 32 - len(woq), "o", 24 - len(oq))
        if rgA.ndone == len(rgA.items) and k >= TCHK: break
        if k + 1 == TSB: B("s_waitcnt vmcnt(0)")
        nn = plan[k + 1] if k + 1 < len(plan) else step
        ensure(g + 1, min(32, issued_upto(), (rgA.ndone + nn + 9) // 10 + opt.get("textra", 1)))
        g += 1; cur[0] = g; k += 1
        tail_barrier(f"T{k}")
        if k == 1:
            for c in range(16, 20): landed[("O", c)] = g
        if k in (1, 2, 4, 6, 8): stamp(A, opt, "A", f"T{k}")
        assert k < 40
    stamp(A, opt, "A", "opend")
    A(f"""
    s_mul_i32 s49, s{S_QT}, 10240
    s_add_u32 s57, s49, 4096
    s_add_u32 s58, s49, 8192
    s_nop 5
    """)
    for f in range(10):
        d = 112 + 4 * f
        for i in range(4):
            A(f"v_cvt_pk_bf16_f32 v{d+i}, v{ACC+8*f+2*i}, v{ACC+8*f+2*i+1}")
        so = ["s49", "s57", "s58"][f // 4]
        A(f"buffer_store_dwordx4 {vr(d,4)}, v{VL16}, {sr(S_PP,4)}, {so} offen offset:{(f%4)*1024} sc1")
    stamp(A, opt, "A", "pst")
    A("s_branch K_final")
    F = B
    F("K_final:")
    F(f"""
    ; item n = lane (+64): g = n/8, r = n%8 ; partial addr = (g/2)*1024 + ((g%2)*32 + 8*oct + r)*16 ; out addr = r*2560 + g*16
    v_lshrrev_b32 v1, 3, v{L}          ; g
    v_and_b32 v2, 7, v{L}              ; r
    v_lshrrev_b32 v3, 1, v1
    v_lshlrev_b32 v3, 10, v3
    v_and_b32 v4, 1, v1
    v_lshlrev_b32 v4, 9, v4
    v_add_u32 v3, v3, v4
    v_lshl_add_u32 v3, v2, 4, v3
    s_lshl_b32 s59, s{S_OCT}, 7
    v_add_u32 v3, s59, v3
    v_add_u32 v4, 4096, v3             ; round 1
    v_mul_u32_u24 v5, 2560, v2
    v_lshl_add_u32 v5, v1, 4, v5
    s_mul_i32 s49, s{S_QT}, 10240
    s_mul_i32 s57, s{S_U}, 5120
    s_add_u32 s49, s49, s57
    """)
    for gg in range(4):
        F(f"s_add_u32 s{52+gg}, s49, {gg*30720}")
    F("s_waitcnt vmcnt(0)")
    F("s_barrier")
    if opt.get("stamp"):
        for nm in ("f0", "f1", "done"):
            while len(STAMPS["A"]) < len(STAMPS["B"]): STAMPS["A"].append("-")
            while len(STAMPS["B"]) < len(STAMPS["A"]): STAMPS["B"].append("-")
            STAMPS["A"].append(nm); STAMPS["B"].append(nm)
    stamp(F, opt, "B", "f0")
    F("s_barrier")
    stamp(F, opt, "B", "f1")
    for gg in range(4):
        F(f"buffer_load_dwordx4 {vr(8+4*gg,4)}, v3, {sr(S_PG,4)}, s{52+gg} offen sc1")
    F("s_mov_b64 exec, 0xffff")
    for gg in range(4):
        F(f"buffer_load_dwordx4 {vr(24+4*gg,4)}, v4, {sr(S_PG,4)}, s{52+gg} offen sc1")
    F("s_mov_b64 exec, -1")
    for rnd in range(2):
        Ac = 40 + 8 * rnd
        for gg in range(4):
            F(f"s_waitcnt vmcnt({7-4*rnd-gg+rnd})")
            for i in range(4):
                r = 8 + 16 * rnd + 4 * gg + i
                if gg == 0:
                    F(f"v_lshlrev_b32 v{Ac+2*i}, 16, v{r}")
                    F(f"v_and_b32 v{Ac+2*i+1}, 0xffff0000, v{r}")
                else:
                    F(f"v_lshlrev_b32 v6, 16, v{r}")
                    F(f"v_and_b32 v7, 0xffff0000, v{r}")
                    F(f"v_add_f32 v{Ac+2*i}, v{Ac+2*i}, v6")
                    F(f"v_add_f32 v{Ac+2*i+1}, v{Ac+2*i+1}, v7")
        for i in range(4):
            F(f"v_cvt_pk_bf16_f32 v{56+4*rnd+i}, v{Ac+2*i}, v{Ac+2*i+1}")
        if rnd == 1: F("s_mov_b64 exec, 0xffff")
        F(f"buffer_store_dwordx4 {vr(56+4*rnd,4)}, v5, {sr(S_OUT,4)}, s{S_OOFF} offen offset:{128*rnd}")
    F("s_mov_b64 exec, -1")
    if opt.get("stamp"):
        F("s_waitcnt vmcnt(0)")
        stamp(F, opt, "B", "done")
        stamp_flush(F, opt)
    if opt.get("pad_from"):
        F("""
        K_pad:
        s_memrealtime s[92:93]
        s_waitcnt lgkmcnt(0)
        s_sub_u32 s92, s92, s101
        s_cmp_lt_i32 s92, 0
        s_cbranch_scc1 K_pad
        """)
    F("s_endpgm")
    LD(f"""
    s_cmp_eq_u32 s{S_U}, 1
    s_cbranch_scc0 K_end
    s_barrier           ; F0
    """)
    signal()
    vm.q = []
    poll_issue(); poll_check()
    LD("s_barrier           ; F1")
    LD("K_end:")
    LD("s_endpgm")
    R = Asm()
    for lr, lb, S, Sn, Pc, first in rare:
        R(f"{lr}:")
        maxtree(S, R)
        R(f"""
        v_mov_b32 v{TT+1}, v{TT}
        s_nop 1
        v_permlane32_swap_b32 v{TT}, v{TT+1}
        v_max_f32 v{TT}, v{TT}, v{TT+1}
        v_max_f32 v{V_L+1}, 0, v{TT}           ; delta >= 0
        v_sub_f32 v{A1}, 0, v{V_L+1}
        v_exp_f32 v{A1}, v{A1}                 ; 2^-delta
        s_nop 4
        """)
        for i in range(16): R(f"v_sub_f32 v{S+i}, v{S+i}, v{V_L+1}")
        for i in range(16): R(f"v_sub_f32 v{V_CM+i}, v{V_CM+i}, v{V_L+1}")
        if Sn is not None:
            for i in range(16): R(f"v_sub_f32 v{Sn+i}, v{Sn+i}, v{V_L+1}")
        R(f"v_mul_f32 v{V_L}, v{V_L}, v{A1}")
        if not first:
            for i in range(64): R(f"v_mul_f32 v{V_O+i}, v{V_O+i}, v{A1}")
        for op in soft_ops(S, Pc): R(op)
        R("s_nop 1")
        R(f"s_branch {lb}")
    def nb(x): return sum("s_barrier" in l for l in x.lines)
    nq = nb(LQ) // ncl
    nfin = 2
    assert nb(A) + nfin == nb(B) == nq + nb(LD), (nb(A), nb(B), nq, nb(LD))
    body = P.text() + LQ.text() + LD.text() + C.text() + A.text() + B.text() + "K_codeend:\n" + R.text()
    return dict(name=NAME + "_kernel", body=body, grid=256, block=512, lds=163840, vgpr=256, sgpr=102)

if __name__ == "__main__":
    out = sys.argv[1] if len(sys.argv) > 1 else "v8.s"
    opt = json.loads(sys.argv[2]) if len(sys.argv) > 2 else {}
    write_file(out, [kernel(opt)])
    if opt.get("stamp"):
        open(out, "a").write("; STAMPS2 " + json.dumps(STAMPS) + "\n")
```
